```python
import torch

def _softmax(x, axis=-1):
    return torch.softmax(x, dim=axis)
def _gelu(x):
    return torch.nn.functional.gelu(x, approximate="tanh")
def _silu(x):
    return torch.nn.functional.silu(x)
def _sigmoid(x):
    return torch.sigmoid(x)
def _layernorm(x, axis=-1, eps=1e-5):
    m = x.mean(dim=axis, keepdim=True)
    v = x.var(dim=axis, keepdim=True, unbiased=False)
    return (x - m) / torch.sqrt(v + eps)
def _scatter_add(tgt, idx, src, axis=0):
    return tgt.clone().index_add_(axis, idx, src)
def _segment_sum(src, seg, n):
    out = torch.zeros((n,) + src.shape[1:], dtype=src.dtype)
    return out.index_add_(0, seg, src)
def _pad(x, pw):
    flat = tuple(v for pair in reversed(pw) for v in pair)
    return torch.nn.functional.pad(x, flat)

kernel_name = 'gated_mix__mha_block_cached__glu_gated_bilinear__decode'

def setup_inputs():

    _w = (lambda a: (lambda t: t.to(torch.bfloat16) if t.is_floating_point() else t)(torch.as_tensor(a)))
    def _A_setup():
        B, Sq, D = 1, 1, 512
        H, Sk, Dh = 32, 8192, 128
        return {
            "x": _w((lambda *s: torch.randn(*s, dtype=torch.bfloat16) * 0.05)(B, Sq, D)),
            "k_cache": _w((lambda *s: torch.randn(*s, dtype=torch.bfloat16) * 3.2)(B, H, Sk, Dh)),
            "v_cache": _w((lambda *s: torch.randn(*s, dtype=torch.bfloat16) * 0.2)(B, H, Sk, Dh)),
            "wq": _w((lambda *s: torch.randn(*s, dtype=torch.bfloat16) * 3.2)(D, H * Dh) * (D ** -0.5)),
            "wo": _w((lambda *s: torch.randn(*s, dtype=torch.bfloat16) * 0.2)(H * Dh, D) * ((H * Dh) ** -0.5)),
        }
    _A_in = _A_setup()

    def _B_setup():
        B, S, D, F = 1, 1, 512, 1376
        return {
            "x": _w((lambda *s: torch.randn(*s, dtype=torch.bfloat16) * 0.05)(B, S, D)),
            "w_gate": _w((lambda *s: torch.randn(*s, dtype=torch.bfloat16) * 0.8)(D, F) * (D ** -0.5)),
            "w_up": _w((lambda *s: torch.randn(*s, dtype=torch.bfloat16) * 0.8)(D, F) * (D ** -0.5)),
            "w_down": _w((lambda *s: torch.randn(*s, dtype=torch.bfloat16) * 0.8)(F, D) * (F ** -0.5)),
        }
    _B_in = _B_setup()

    return {
        "A_x": _A_in["x"],
        "A_k_cache": _A_in["k_cache"],
        "A_v_cache": _A_in["v_cache"],
        "A_wq": _A_in["wq"],
        "A_wo": _A_in["wo"],
        "B_x": _B_in["x"],
        "B_w_gate": _B_in["w_gate"],
        "B_w_up": _B_in["w_up"],
        "B_w_down": _B_in["w_down"],
        "gate_w": _w((lambda *s: torch.randn(*s, dtype=torch.bfloat16) * 0.1)(512) * 16.0),
    }

def reference(A_x, A_k_cache, A_v_cache, A_wq, A_wo, B_x, B_w_gate, B_w_up, B_w_down, gate_w):
    def _A_ref(x, k_cache, v_cache, wq, wo):
        B, Sq, D = x.shape
        H, Dh = 32, 128
        q = (lambda x, *d: x.permute(*d))((x @ wq).reshape(B, Sq, H, Dh), 0, 2, 1, 3)
        scores = torch.einsum("bhqd,bhkd->bhqk", q, k_cache) * (Dh ** -0.5)
        p = _softmax(scores, axis=-1)
        o = torch.einsum("bhqk,bhkd->bhqd", p, v_cache)
        return (lambda x, *d: x.permute(*d))(o, 0, 2, 1, 3).reshape(B, Sq, H * Dh) @ wo

    def _B_ref(x, w_gate, w_up, w_down):
        g = torch.einsum("bsd,df->bsf", x, w_gate)
        u = torch.einsum("bsd,df->bsf", x, w_up)
        h = g * u
        return torch.einsum("bsf,fd->bsd", h, w_down)

    x = A_x
    g = _sigmoid((x * gate_w).sum(-1, keepdims=True))
    a = _A_ref(x, A_k_cache, A_v_cache, A_wq, A_wo)
    b = _B_ref(x, B_w_gate, B_w_up, B_w_down)
    return g * a + (1 - g) * b
```

```python
import re
TRANS = ("v_exp_f32", "v_log_f32", "v_rcp_f32", "v_rsq_f32", "v_sqrt_f32", "v_sin_f32", "v_cos_f32")
def regs_of(tok):
    tok = tok.strip()
    tok = re.sub(r"^-|^\||\|$|^abs\(|\)$", "", tok)
    m = re.fullmatch(r"([vsa])(\d+)", tok)
    if m: return [(m.group(1), int(m.group(2)))]
    m = re.fullmatch(r"([vsa])\[(\d+):(\d+)\]", tok)
    if m: return [(m.group(1), i) for i in range(int(m.group(2)), int(m.group(3)) + 1)]
    if tok == "vcc": return [("s", 106), ("s", 107)]
    if tok in ("vcc_lo",): return [("s", 106)]
    if tok in ("vcc_hi",): return [("s", 107)]
    if tok == "exec": return [("s", 126), ("s", 127)]
    if tok == "m0": return [("s", 124)]
    return []
class Asm:
    def __init__(self):
        self.lines = []
        self.hist = []
    def raw(self, text):
        self.lines.append(text)
    def label(self, name):
        self.nop(4) if self._pending(5) else None
        self.lines.append(name + ":")
        self.hist = []
    def _pending(self, n):
        d = 0
        for h in reversed(self.hist):
            if d >= n: break
            if h["valu"] and (h["vw"] or h["sw"]): return True
            if h["store"]: return True
            d += h["cost"]
        return False
    def nop(self, states):
        while states > 0:
            k = min(states, 16)
            self.lines.append(f"    s_nop {k-1}")
            self.hist.append(dict(cost=k, valu=False, vw=set(), sw=set(), trans=False, store=set()))
            states -= k
    def comment(self, t):
        self.lines.append("    ; " + t)
    def __call__(self, text):
        for t in text.strip().split("\n"):
            t = t.strip()
            if not t or t.startswith(";"):
                if t: self.lines.append("    " + t)
                continue
            self.one(t)
    def one(self, t):
        code = t.split(";")[0].strip()
        parts = code.split(None, 1)
        op = parts[0]
        rest = parts[1] if len(parts) > 1 else ""
        ops = []
        cur = ""; depth = 0
        for ch in rest:
            if ch == "[": depth += 1
            if ch == "]": depth -= 1
            if ch == "," and depth == 0:
                ops.append(cur.strip()); cur = ""
            else: cur += ch
        if cur.strip(): ops.append(cur.strip())
        mods = ""
        clean = []
        for o in ops:
            sp = o.split(None, 1)
            clean.append(sp[0])
            if len(sp) > 1: mods += " " + sp[1]
        ops = clean
        is_valu = op.startswith("v_")
        is_vmem = op.startswith(("buffer_", "global_", "flat_"))
        is_ds = op.startswith("ds_")
        is_dpp = is_valu and ("_dpp" in op or "row_" in mods or "quad_perm" in mods)
        is_perml = op.startswith("v_permlane")
        is_rl = op.startswith(("v_readlane", "v_readfirstlane", "v_writelane"))
        base = op.replace("_e32", "").replace("_e64", "").replace("_dpp", "")
        vw = set(); sw = set(); reads_v = set(); reads_s = set()
        store = set()
        if is_valu:
            dst = ops[0]
            srcs = ops[1:]
            dr = regs_of(dst)
            if base.startswith("v_cmp"):
                for r in dr: sw.add(r[1])
            elif base in ("v_readlane_b32", "v_readfirstlane_b32"):
                for r in dr: sw.add(r[1])
            else:
                for k, i in dr:
                    if k == "v": vw.add(i)
                    elif k == "s": sw.add(i)
            if base in ("v_add_co_u32", "v_sub_co_u32", "v_addc_co_u32", "v_subb_co_u32", "v_subrev_co_u32", "v_mad_u64_u32", "v_div_scale_f32"):
                for r in regs_of(ops[1]): sw.add(r[1])
                srcs = ops[2:]
            if is_perml and "swap" in base:
                for k, i in regs_of(ops[1]): vw.add(i)
                for k, i in dr: reads_v.add(i)
            if base in ("v_fmac_f32", "v_dot2c_f32_bf16", "v_writelane_b32", "v_mac_f32", "v_pk_fmac_f16") or is_dpp:
                for k, i in dr:
                    if k == "v": reads_v.add(i)
            for s_ in srcs:
                for k, i in regs_of(s_):
                    if k == "v": reads_v.add(i)
                    elif k == "s": reads_s.add(i)
            if base in ("v_cndmask_b32",) and len(ops) == 3: reads_s |= {106, 107}
        elif is_vmem or is_ds:
            for o in ops:
                for k, i in regs_of(o):
                    if k == "v": reads_v.add(i)
                    elif k == "s": reads_s.add(i)
            if is_vmem and ("store" in op or "atomic" in op) and ("x3" in op or "x4" in op or "x2" in op and "cmpswap" in op):
                d = ops[0] if op.startswith("buffer") else ops[1]
                store = set(i for k, i in regs_of(d))
        if op.startswith(("s_cbranch", "s_branch")) and self._pending(4):
            self.nop(4)
        need = 0
        d = 0
        trans_op = base in TRANS
        fullop = op + ("_dpp" if (is_dpp and "_dpp" not in op) else "")
        for h in reversed(self.hist):
            if d >= 6: break
            if h["valu"]:
                if (is_dpp or is_perml) and (h["vw"] & (reads_v | (vw if is_perml else set()))): need = max(need, 2 - d)
                if is_rl and (h["vw"] & reads_v): need = max(need, 1 - d)
                if is_valu and (h["sw"] & reads_s):
                    need = max(need, (4 if is_rl else 2) - d)
                if (is_vmem) and (h["sw"] & reads_s): need = max(need, 5 - d)
                if is_ds and (h["sw"] & reads_s): need = max(need, 5 - d)
                if h["trans"] and is_valu and not trans_op and (h["vw"] & (reads_v | vw)): need = max(need, 1 - d)
                if h["trans"] and (is_vmem or is_ds) and (h["vw"] & reads_v): need = max(need, 1 - d)
                if (not is_valu and not is_vmem and not is_ds) and h["sw"]:
                    sr = set()
                    for o in ops:
                        for k, i in regs_of(o):
                            if k == "s": sr.add(i)
                    if op.startswith("s_cbranch_vcc"): sr |= {106, 107}
                    if h["sw"] & sr: need = max(need, (5 if op.startswith("s_cbranch_vcc") else 2) - d)
            if h.get("dot") is not None and (is_valu or is_vmem or is_ds):
                acc_only = False
                if h["dot"] == fullop:
                    srcab = set()
                    for o_ in ops[1:3]:
                        for k_, i_ in regs_of(o_):
                            if k_ == "v": srcab.add(i_)
                    if h["vw"] & srcab: need = max(need, 3 - d)
                else:
                    if h["vw"] & (reads_v | vw): need = max(need, 3 - d)
            if h["store"] and is_valu and (h["store"] & vw): need = max(need, 2 - d)
            if h["store"] and (is_vmem or is_ds) and "load" in op or (h["store"] and is_ds and "read" in op):
                dr = set(i for k, i in regs_of(ops[0]) if k == "v") if ops else set()
                if h["store"] & dr: need = max(need, 2 - d)
            d += h["cost"]
        if need > 0: self.nop(need)
        self.lines.append("    " + t)
        cost = 1
        if op == "s_nop": cost = int(ops[0]) + 1
        self.hist.append(dict(cost=cost, valu=is_valu, vw=vw, sw=sw, trans=trans_op, store=store, dot=(fullop if base.startswith("v_dot") else None)))
        if len(self.hist) > 16: self.hist = self.hist[-16:]
        if op in ("s_branch", "s_endpgm", "s_setpc_b64"): self.hist = []
    def text(self):
        return "\n".join(self.lines) + "\n"
```

```python
KN = "gated_mix__mha_block_cached__glu_gated_bilinear__decode_kernel"
def header(grid, block, lds, extra_launch=None):
    ref = open("gated_mix__mha_block_cached__glu_gated_bilinear__decode.s.ref").read().split("\n")
    lines = []
    for l in ref:
        if l.startswith("; @launch"):
            break
        lines.append(l)
    if extra_launch is None:
        lines.append(f"; @launch grid=({grid},1,1) block=({block},1,1) lds={lds}")
    else:
        lines += extra_launch
    lines += ['.amdgcn_target "amdgcn-amd-amdhsa--gfx950"', ".text"]
    return "\n".join(lines) + "\n"
def kstart(name=KN):
    return f".globl {name}\n.p2align 8\n.type {name},@function\n{name}:\n"
def kdesc(name=KN, vgpr=256, sgpr=102, accum=None):
    if accum is None: accum = (vgpr + 3) // 4 * 4
    return f""".section .rodata,"a"
.p2align 6
.amdhsa_kernel {name}
  .amdhsa_next_free_vgpr {vgpr}
  .amdhsa_next_free_sgpr {sgpr}
  .amdhsa_accum_offset {accum}
  .amdhsa_group_segment_fixed_size 0
  .amdhsa_kernarg_size 104
  .amdhsa_user_sgpr_count 2
  .amdhsa_user_sgpr_kernarg_segment_ptr 1
  .amdhsa_system_sgpr_workgroup_id_x 1
.end_amdhsa_kernel
.text
"""
```

```python
import sys, struct
from emit import Asm
from hdr import *

DIAG = "-diag" in sys.argv
OUT = sys.argv[1]
def opt(name, default):
    for x in sys.argv:
        if x.startswith(f"-{name}="): return int(x.split("=")[1])
    return default
DEPTH = opt("depth", 3)
WOD = opt("wod", 2)
BD = opt("bd", 4)
NORED = "-nored" in sys.argv
def f2u(x): return struct.unpack("<I", struct.pack("<f", x))[0]

QMB, BMB, MLB, EPO, YBB, YMB, DIAGO = 0x0, 0x40000, 0x70000, 0x7F000, 0x80000, 0x100000, 0x200000
WS_SIZE = 0x300000
L_FQ, L_MC = 8, 12
L_M, L_L, L_Q, L_OPK, L_G = 0x40, 0x80, 0x100, 0x200, 0x340
L_OP, OPS = 0x400, 544
L_RED = 0x400 + 8 * 544
LDS_SIZE = L_RED + 1024
SC = (128 ** -0.5) * 1.4426950408889634
TMO_LDS = 1 << 20
TMO_MEM = 1 << 16

a = Asm()
DPPF = "row_mask:0xf bank_mask:0xf"
S_WAVE, S_H, S_S, S_P = "s34", "s35", "s36", "s37"
KSRD, VSRD, WOSRD, TSRD, WSRD = "s[40:43]", "s[44:47]", "s[48:51]", "s[52:55]", "s[60:63]"
VL, VZ, VT = "v125", "v127", "v126"

def stamp(idx):
    if DIAG: a(f"s_memrealtime s[{80+2*idx}:{81+2*idx}]")
def timeout_check(lbl_abort="L_end"):
    a("s_sub_u32 s75, s75, 1")
    a("s_cmp_eq_u32 s75, 0")
    a(f"s_cbranch_scc1 {lbl_abort}")
_lc = [0]
def newlabel(p):
    _lc[0] += 1
    return f"L_{p}{_lc[0]}"
def lds_wait_flag(off, cmp_op="s_cmp_lg_u32", val="0", sleep=2):
    l0, l1 = newlabel("lw"), newlabel("lwd")
    a(f"s_mov_b32 s75, {TMO_LDS}")
    a.label(l0)
    a(f"ds_read_b32 {VT}, {VZ} offset:{off}")
    a("s_waitcnt lgkmcnt(0)")
    a(f"v_readfirstlane_b32 s38, {VT}")
    a(f"{cmp_op} s38, {val}")
    a(f"s_cbranch_scc1 {l1}")
    timeout_check()
    a(f"s_sleep {sleep}")
    a(f"s_branch {l0}")
    a.label(l1)
def lds_set_flag(off):
    a("s_mov_b64 exec, 1")
    a(f"v_mov_b32 {VT}, 1")
    a(f"ds_write_b32 {VZ}, {VT} offset:{off}")
    a("s_mov_b64 exec, -1")
def rowreduce8(acc, o0, o1):
    for j in range(4): a(f"v_permlane32_swap_b32 v{acc[j]}, v{acc[j+4]}")
    for j in range(4): a(f"v_add_f32 v{acc[j]}, v{acc[j]}, v{acc[j+4]}")
    a(f"v_permlane16_swap_b32 v{acc[0]}, v{acc[2]}")
    a(f"v_permlane16_swap_b32 v{acc[1]}, v{acc[3]}")
    a(f"v_add_f32 v{o0}, v{acc[0]}, v{acc[2]}")
    a(f"v_add_f32 v{o1}, v{acc[1]}, v{acc[3]}")
def row_allreduce(op, reg):
    for n in (8, 4, 2, 1):
        a(f"{op}_dpp v{reg}, v{reg}, v{reg} row_ror:{n} {DPPF}")
def wave_reduce_to63(op, reg):
    row_allreduce(op, reg)
    a(f"{op}_dpp v{reg}, v{reg}, v{reg} row_bcast:15 row_mask:0xa bank_mask:0xf")
    a(f"{op}_dpp v{reg}, v{reg}, v{reg} row_bcast:31 row_mask:0xc bank_mask:0xf")
def rb16(dst, src):
    a(f"v_cvt_pk_bf16_f32 v{dst}, 0, v{src}")
def red16(regs):
    for n in (4, 8):
        for r in regs: a(f"v_add_f32_dpp v{r}, v{r}, v{r} row_ror:{n} {DPPF}")
    a(f"v_permlane32_swap_b32 v{regs[0]}, v{regs[2]}")
    a(f"v_permlane32_swap_b32 v{regs[1]}, v{regs[3]}")
    a(f"v_add_f32 v{regs[0]}, v{regs[0]}, v{regs[2]}")
    a(f"v_add_f32 v{regs[1]}, v{regs[1]}, v{regs[3]}")
    a(f"v_permlane16_swap_b32 v{regs[0]}, v{regs[1]}")
    a(f"v_add_f32 v{regs[0]}, v{regs[0]}, v{regs[1]}")
def tag_bad(grans, acc, t):
    first = True
    for g in grans:
        if first:
            a(f"v_xor_b32 v{acc}, s4, v{g+2}")
            a(f"v_xor_b32 v{t}, s5, v{g+3}")
            a(f"v_or_b32 v{acc}, v{acc}, v{t}")
            first = False
        else:
            a(f"v_xor_b32 v{t}, s4, v{g+2}")
            a(f"v_or_b32 v{acc}, v{acc}, v{t}")
            a(f"v_xor_b32 v{t}, s5, v{g+3}")
            a(f"v_or_b32 v{acc}, v{acc}, v{t}")
    a(f"v_cmp_ne_u32 vcc, 0, v{acc}")
def make_tags():
    a("s_add_u32 s4, s6, 1")
    a("s_mul_i32 s5, s4, 0x9e3779b1")
    a("s_xor_b32 s5, s5, 0x5bd1e995")
class Sched:
    def __init__(self): self.issued = []; self.landed = -1
    def issue(self, name): self.issued.append(name)
    def wait(self, name):
        idx = self.issued.index(name)
        if idx > self.landed:
            a(f"s_waitcnt vmcnt({len(self.issued) - 1 - idx})")
            self.landed = idx
def ws_srd():
    a("s_mov_b32 s60, s32")
    a("s_mov_b32 s61, s33")
    a(f"s_mov_b32 s62, {WS_SIZE}")
    a("s_mov_b32 s63, 0x20000")

a("s_load_dwordx16 s[8:23], s[0:1], 0")
a("s_load_dwordx8 s[24:31], s[0:1], 64")
a("s_load_dwordx2 s[32:33], s[0:1], 96")
a("s_cmp_ge_u32 s2, 256")
a("s_cbranch_scc1 L_end")
a(f"v_and_b32 {VL}, 63, v0")
a(f"v_lshrrev_b32 {VT}, 6, v0")
a(f"v_mov_b32 {VZ}, 0")
a(f"v_readfirstlane_b32 {S_WAVE}, {VT}")
a("v_lshlrev_b32 v124, 4, v0")
a(f"s_and_b32 {S_H}, s2, 7")
a(f"s_lshl_b32 {S_H}, {S_H}, 2")
a(f"s_lshr_b32 {S_S}, s2, 3")
a(f"s_and_b32 {S_S}, {S_S}, 3")
a(f"s_or_b32 {S_H}, {S_H}, {S_S}")
a(f"s_lshr_b32 {S_S}, s2, 5")
a(f"s_lshl_b32 {S_P}, {S_H}, 3")
a(f"s_or_b32 {S_P}, {S_P}, {S_S}")
a(f"s_cmp_lg_u32 {S_WAVE}, 8")
a("s_cbranch_scc1 L_noinit")
a(f"v_lshlrev_b32 {VT}, 2, {VL}")
a(f"ds_write_b32 {VT}, {VZ}")
a("s_waitcnt lgkmcnt(0)")
a.label("L_noinit")
a("s_barrier")
a(f"s_lshl_b32 s38, {S_P}, 18")
a("s_mov_b32 s42, 0x40000")
a("s_mov_b32 s43, 0x20000")
a("s_mov_b32 s46, 0x40000")
a("s_mov_b32 s47, 0x20000")
a(f"s_cmp_ge_u32 {S_WAVE}, 8")
a("s_waitcnt lgkmcnt(0)")
if DIAG: a("s_memrealtime s[80:81]")
a("s_cbranch_scc1 L_svc")
a("s_add_u32 s40, s10, s38")
a("s_addc_u32 s41, s11, 0")
a("s_add_u32 s44, s12, s38")
a("s_addc_u32 s45, s13, 0")
sch = Sched()
NA, NB = 0, 64
def slot(kind, i):
    if kind == "K":
        if i < 16: return 4 * i
        if i < 24: return 32 + 4 * (i - 16)
        return 64 + 4 * (i - 24)
    else:
        if i < 8: return 64 + 4 * i
        if i < 16: return 4 * (i - 8)
        if i < 24: return 4 * (i - 16)
        return 32 + 4 * (i - 24)
order = [("K", i) for i in range(16)] + [("V", i) for i in range(16)] + [("K", i) for i in range(16, 32)] + [("V", i) for i in range(16, 32)]
def issue(n):
    k, i = order[n]
    if n >= DEPTH: sch.wait("%s%d" % order[n - DEPTH])
    d = slot(k, i)
    srd = KSRD if k == "K" else VSRD
    if i == 0:
        a(f"buffer_load_dwordx4 v[{d}:{d+3}], v124, {srd}, 0 offen nt")
    else:
        a(f"s_mov_b32 s67, {i*8192}")
        a(f"buffer_load_dwordx4 v[{d}:{d+3}], v124, {srd}, s67 offen nt")
    sch.issue(f"{k}{i}")
def qk(i):
    sch.wait(f"K{i}")
    d = slot("K", i)
    for j in range(4):
        a(f"v_dot2c_f32_bf16 v{96 + i % 16}, v{d+j}, v{112+j}")
def pv(j):
    sch.wait(f"V{j}")
    d = slot("V", j)
    for t in range(4):
        a(f"v_dot2c_f32_bf16_dpp v{116+2*t}, v110, v{d+t} row_newbcast:{j % 16} {DPPF}")
        a(f"v_dot2c_f32_bf16_dpp v{117+2*t}, v111, v{d+t} row_newbcast:{j % 16} {DPPF}")
def butterfly():
    for i in range(8):
        a(f"v_add_f32_dpp v{96+i}, v{96+i}, v{96+i} row_ror:8 row_mask:0xf bank_mask:0x3")
        a(f"v_add_f32_dpp v{96+i}, v{104+i}, v{104+i} row_ror:8 row_mask:0xf bank_mask:0xc")
    for i in range(4):
        a(f"v_add_f32_dpp v{96+i}, v{96+i}, v{96+i} row_ror:12 row_mask:0xf bank_mask:0x5")
        a(f"v_add_f32_dpp v{96+i}, v{100+i}, v{100+i} row_ror:4 row_mask:0xf bank_mask:0xa")
    for i in range(4):
        a(f"v_add_f32_dpp v{96+i}, v{96+i}, v{96+i} quad_perm:[2,3,0,1] {DPPF}")
    a("v_cndmask_b32 v96, v96, v98, s[68:69]")
    a("v_cndmask_b32 v97, v97, v99, s[68:69]")
    a(f"v_add_f32_dpp v96, v96, v96 quad_perm:[1,0,3,2] {DPPF}")
    a(f"v_add_f32_dpp v97, v97, v97 quad_perm:[1,0,3,2] {DPPF}")
    a("v_cndmask_b32 v96, v96, v97, s[70:71]")
    a("v_mul_f32 v96, s78, v96")
    a("v_mov_b32 v97, v96")
    wave_reduce_to63("v_max_f32", 97)
C = {n: [] for n in range(64)}
def at(n, f): C[n].append(f)
def setup_scalars():
    ws_srd()
    a("s_mov_b32 s68, 0xcccccccc")
    a("s_mov_b32 s69, 0xcccccccc")
    a("s_mov_b32 s70, 0xaaaaaaaa")
    a("s_mov_b32 s71, 0xaaaaaaaa")
    a(f"s_mov_b32 s78, {f2u(SC):#x}")
    a(f"s_load_dword s6, s[32:33], {EPO}")
    a(f"v_and_b32 v121, 15, {VL}")
    a("v_lshlrev_b32 v121, 4, v121")
    for i in range(16): a(f"v_mov_b32 v{96+i}, 0")
at(DEPTH - 1, setup_scalars)
def qwait():
    lds_wait_flag(L_FQ)
    a(f"ds_read_b128 v[112:115], v121 offset:{L_Q}")
    stamp(1)
    a("s_waitcnt lgkmcnt(0)")
at(19, qwait)
for n in range(20, 24):
    for i in range(4 * (n - 20), 4 * (n - 20) + 4): at(n, lambda i=i: qk(i))
def softmax0():
    butterfly()
    a("v_readlane_b32 s72, v97, 63")
    a("v_subrev_f32 v96, s72, v96")
    a("v_exp_f32 v96, v96")
    a("v_cvt_pk_bf16_f32 v110, v96, 0")
    a("v_cvt_pk_bf16_f32 v111, 0, v96")
    a("v_mov_b32 v97, v111")
    wave_reduce_to63("v_add_f32", 97)
    a("v_readlane_b32 s73, v97, 63")
    for j in range(8): a(f"v_mov_b32 v{116+j}, 0")
    make_tags()
    stamp(2)
at(24, softmax0)
for j in range(8): at(25 + j // 2, lambda j=j: pv(j))
for j in range(8): at(max(29, 24 + j + DEPTH), lambda j=j: pv(8 + j))
nz = max(29, 24 + 7 + DEPTH)
def zeroS():
    for i in range(16): a(f"v_mov_b32 v{96+i}, 0")
at(nz, zeroS)
for j in range(16): at(max(nz, 32 + j + DEPTH), lambda j=j: qk(16 + j))
ns = 32 + 15 + DEPTH
def softmax1():
    butterfly()
    a("v_readlane_b32 s74, v97, 63")
    a("v_mov_b32 v98, s72")
    a("v_max_f32 v98, s74, v98")
    a("v_sub_f32 v96, v96, v98")
    a("v_sub_f32 v99, s72, v98")
    a("v_exp_f32 v96, v96")
    a("v_exp_f32 v99, v99")
    a("v_readfirstlane_b32 s72, v98")
    a("v_cvt_pk_bf16_f32 v110, v96, 0")
    a("v_cvt_pk_bf16_f32 v111, 0, v96")
    for j in range(8): a(f"v_mul_f32 v{116+j}, v99, v{116+j}")
    a("s_mov_b64 exec, 1")
    a(f"s_lshl_b32 s38, {S_WAVE}, 2")
    a("v_mov_b32 v97, s38")
    a(f"ds_write_b32 v97, v98 offset:{L_M}")
    a("v_mov_b32 v98, 1")
    a(f"ds_add_u32 {VZ}, v98 offset:{L_MC}")
    a("s_mov_b64 exec, -1")
    a("v_mov_b32 v97, v111")
    wave_reduce_to63("v_add_f32", 97)
    a("v_mul_f32 v99, s73, v99")
    a("v_readlane_b32 s73, v97, 63")
    a("v_add_f32 v102, s73, v99")
    stamp(3)
at(ns, softmax1)
done = 16
for n in range(ns + 1, 64):
    k = 0
    while done < 32 and k < 2 and (48 + (done - 16) + DEPTH) <= n:
        at(n, lambda j=done: pv(j)); done += 1; k += 1
for n in range(64):
    issue(n)
    for f in C[n]: f()
lds_wait_flag(L_MC, "s_cmp_ge_u32", "8", sleep=1)
a(f"v_and_b32 v99, 7, {VL}")
a("v_lshlrev_b32 v99, 2, v99")
a(f"ds_read_b32 v100, v99 offset:{L_M}")
a(f"v_lshrrev_b32 v98, 4, {VL}")
a(f"v_and_b32 v103, 15, {VL}")
a("v_lshlrev_b32 v103, 5, v103")
a("v_lshl_add_u32 v103, v98, 3, v103")
a(f"s_mul_i32 s38, {S_WAVE}, {OPS}")
a("v_add_u32 v104, s38, v103")
a("s_waitcnt lgkmcnt(0)")
a(f"v_max_f32_dpp v100, v100, v100 quad_perm:[1,0,3,2] {DPPF}")
a(f"v_max_f32_dpp v100, v100, v100 quad_perm:[2,3,0,1] {DPPF}")
a(f"v_max_f32_dpp v100, v100, v100 row_half_mirror {DPPF}")
a("v_sub_f32 v101, s72, v100")
a("v_exp_f32 v101, v101")
a(f"s_lshl_b32 s38, {S_WAVE}, 2")
a("v_mov_b32 v99, s38")
a("v_mul_f32 v102, v102, v101")
a("s_mov_b64 exec, 1")
a(f"ds_write_b32 v99, v102 offset:{L_L}")
a("s_mov_b64 exec, -1")
for j in range(done, 32): pv(j)
stamp(4)
rowreduce8(list(range(116, 124)), 116, 117)
a("v_mul_f32 v116, v101, v116")
a("v_mul_f32 v117, v101, v117")
a(f"ds_write_b64 v104, v[116:117] offset:{L_OP}")
a.label("L_barA")
a(f"v_and_b32 v106, 7, {VL}")
a(f"v_mul_u32_u24 v106, {OPS}, v106")
a(f"v_bfe_u32 v107, {VL}, 3, 2")
a("v_lshl_add_u32 v106, v107, 3, v106")
a(f"s_lshl_b32 s38, {S_WAVE}, 5")
a("v_add_u32 v106, s38, v106")
a(f"s_lshl_b32 s38, {S_WAVE}, 4")
a("v_lshl_add_u32 v107, v107, 2, s38")
a("s_mov_b32 s38, 0x01010101")
a("s_mov_b32 s39, 0")
a("s_waitcnt lgkmcnt(0)")
stamp(5)
a("s_barrier")
a(f"ds_read_b64 v[108:109], v106 offset:{L_OP}")
a("s_waitcnt lgkmcnt(0)")
for m in ("quad_perm:[1,0,3,2]", "quad_perm:[2,3,0,1]", "row_half_mirror"):
    a(f"v_add_f32_dpp v108, v108, v108 {m} {DPPF}")
    a(f"v_add_f32_dpp v109, v109, v109 {m} {DPPF}")
a("v_cvt_pk_bf16_f32 v108, v108, v109")
a("s_mov_b64 exec, s[38:39]")
a(f"ds_write_b32 v107, v108 offset:{L_OPK}")
a("s_mov_b64 exec, -1")
a("s_waitcnt lgkmcnt(0)")
a("s_barrier")
a(f"s_cmp_ge_u32 {S_WAVE}, 8")
a("s_cbranch_scc1 L_yphase")
a(f"s_cmp_lg_u32 {S_WAVE}, 0")
a("s_cbranch_scc1 L_pubdone")
a(f"v_and_b32 v99, 7, {VL}")
a("v_lshlrev_b32 v99, 2, v99")
a(f"ds_read_b32 v1, v99 offset:{L_L}")
a("v_mov_b32 v2, s4")
a("v_mov_b32 v3, s5")
a("v_mov_b32 v0, v100")
a("s_waitcnt lgkmcnt(0)")
for m in ("quad_perm:[1,0,3,2]", "quad_perm:[2,3,0,1]", "row_half_mirror"):
    a(f"v_add_f32_dpp v1, v1, v1 {m} {DPPF}")
a(f"s_lshl_b32 s38, {S_P}, 4")
a(f"s_add_u32 s38, s38, {MLB}")
a("s_mov_b64 exec, 1")
a(f"buffer_store_dwordx4 v[0:3], {VZ}, {WSRD}, s38 offen sc1")
a("s_mov_b64 exec, -1")
a("s_branch L_pubdone")
a.label("L_yphase")
a(f"ds_read_b128 v[72:75], v105 offset:{L_OPK}")
a(f"ds_read_b128 v[76:79], v105 offset:{L_OPK+16}")
a("s_waitcnt lgkmcnt(0)")
PMAP = {}
spare = 64
for k in range(8):
    A_, B_ = 8 * k, 8 * k + 4
    PMAP[k] = (spare, B_)
    spare = A_
for k in range(8):
    lo, hi = PMAP[k]
    for j in range(4):
        a(f"v_dot2c_f32_bf16 v{80+2*j}, v{72+k}, v{lo+j}")
        a(f"v_dot2c_f32_bf16 v{81+2*j}, v{72+k}, v{hi+j}")
rowreduce8(list(range(80, 88)), 88, 89)
a(f"v_add_f32_dpp v88, v88, v88 row_ror:8 {DPPF}")
a(f"v_add_f32_dpp v89, v89, v89 row_ror:8 {DPPF}")
a(f"buffer_store_dwordx4 v[88:91], v104, {WSRD}, s79 offen sc1")
stamp(6)
a.label("L_pubdone")
a("s_cmp_ge_u32 s2, 0" if NORED else "s_cmp_ge_u32 s2, 32")
a("s_cbranch_scc1 L_fin")
a(f"s_lshl_b32 s38, {S_WAVE}, 6")
a(f"v_add_u32 v99, s38, {VL}")
a("v_lshlrev_b32 v98, 5, v99")
a("v_lshrrev_b32 v97, 2, v99")
a("v_lshlrev_b32 v97, 4, v97")
a("s_lshl_b32 s38, s2, 14")
a(f"s_add_u32 s38, s38, {YBB}")
a("s_add_u32 s52, s32, s38")
a("s_addc_u32 s53, s33, 0")
a(f"s_mov_b32 s54, {86*128}")
a("s_mov_b32 s55, 0x20000")
a("s_lshl_b32 s38, s2, 15")
a(f"s_add_u32 s38, s38, {YMB}")
a(f"s_mov_b32 s39, {MLB}")
a(f"ds_read_b64 v[24:25], {VZ} offset:{L_G}")
a("s_mov_b32 s79, 0x158")
a("v_cmp_gt_u32 s[72:73], s79, v99")
a(f"s_mov_b32 s75, {TMO_MEM}")
a.label("L_mlpoll")
a(f"buffer_load_dwordx4 v[8:11], v97, {WSRD}, s39 offen sc1")
a("s_waitcnt vmcnt(0)")
tag_bad([8], 20, 21)
a("s_cbranch_vccz L_mlok")
timeout_check()
a("s_sleep 2")
a("s_branch L_mlpoll")
a.label("L_mlok")
a.label("L_rpoll")
a(f"buffer_load_dwordx4 v[0:3], v98, {WSRD}, s38 offen sc1")
a(f"buffer_load_dwordx4 v[4:7], v98, {WSRD}, s38 offen offset:16 sc1")
a(f"buffer_load_dwordx4 v[12:15], v98, {TSRD}, 0 offen sc1")
a(f"buffer_load_dwordx4 v[16:19], v98, {TSRD}, 0 offen offset:16 sc1")
a("v_mov_b32 v26, v8")
a(f"v_max_f32_dpp v26, v26, v26 row_ror:4 {DPPF}")
a(f"v_max_f32_dpp v26, v26, v26 row_ror:8 {DPPF}")
a("v_mov_b32 v27, v26")
a("v_permlane16_swap_b32 v26, v27")
a("v_max_f32 v26, v26, v27")
a("v_sub_f32 v26, v8, v26")
a("v_exp_f32 v26, v26")
a("v_mul_f32 v28, v26, v9")
a(f"v_add_f32_dpp v28, v28, v28 row_ror:4 {DPPF}")
a(f"v_add_f32_dpp v28, v28, v28 row_ror:8 {DPPF}")
a("v_mov_b32 v27, v28")
a("v_permlane16_swap_b32 v28, v27")
a("v_add_f32 v28, v28, v27")
a("v_rcp_f32 v28, v28")
a("s_waitcnt lgkmcnt(0)")
a("v_mul_f32 v26, v26, v24")
a("v_mul_f32 v26, v26, v28")
a("s_waitcnt vmcnt(0)")
tag_bad([12, 16], 20, 21)
a("s_and_b64 s[76:77], vcc, s[72:73]")
tag_bad([0, 4], 20, 21)
a("s_or_b64 s[76:77], s[76:77], vcc")
a("s_cmp_eq_u64 s[76:77], 0")
a("s_cbranch_scc1 L_rok")
timeout_check()
a("s_branch L_rpoll")
a.label("L_rok")
stamp(7)
a("v_mul_f32 v12, v25, v12")
a("v_mul_f32 v13, v25, v13")
a("v_mul_f32 v16, v25, v16")
a("v_mul_f32 v17, v25, v17")
a("v_fma_f32 v2, v26, v4, v16")
a("v_fma_f32 v3, v26, v5, v17")
a("v_fma_f32 v0, v26, v0, v12")
a("v_fma_f32 v1, v26, v1, v13")
red16([0, 1, 2, 3])
a(f"v_and_b32 v8, 3, {VL}")
a("v_lshlrev_b32 v8, 4, v8")
a(f"v_lshrrev_b32 v9, 4, {VL}")
a("v_lshl_add_u32 v8, v9, 2, v8")
a(f"s_lshl_b32 s38, {S_WAVE}, 6")
a("v_add_u32 v9, s38, v8")
a("s_mov_b32 s38, 0x000f000f")
a("s_mov_b32 s39, 0x000f000f")
a("s_mov_b64 exec, s[38:39]")
a(f"ds_write_b32 v9, v0 offset:{L_RED}")
a("s_mov_b64 exec, -1")
a("s_waitcnt lgkmcnt(0)")
a("s_barrier")
a(f"s_cmp_lg_u32 {S_WAVE}, 0")
a("s_cbranch_scc1 L_fin")
a(f"v_lshlrev_b32 v9, 4, {VL}")
a(f"ds_read_b128 v[0:3], v9 offset:{L_RED}")
a("v_lshrrev_b32 v8, 1, v8")
a("s_lshl_b32 s79, s2, 5")
a("s_mov_b32 s52, s28")
a("s_mov_b32 s53, s29")
a("s_mov_b32 s54, 1024")
a("s_mov_b32 s55, 0x20000")
a("v_mov_b32 v4, s4")
a("s_waitcnt lgkmcnt(0)")
red16([0, 1, 2, 3])
a("v_cvt_pk_bf16_f32 v0, v0, 0")
a("s_mov_b64 exec, s[38:39]")
a(f"buffer_store_short v0, v8, {TSRD}, s79 offen")
a("s_cmp_lg_u32 s2, 0")
a("s_cbranch_scc1 L_fin")
a("s_mov_b64 exec, 1")
a(f"s_mov_b32 s38, {EPO}")
a(f"buffer_store_dword v4, {VZ}, {WSRD}, s38 offen sc1")
a.label("L_fin")
a("s_mov_b64 exec, -1")
if DIAG:
    a("s_memrealtime s[96:97]")
    a("s_waitcnt lgkmcnt(0)")
    for k in range(11): a(f"v_mov_b32 v{k}, s{80+2*k}")
    a("s_lshl_b32 s38, s2, 4")
    a(f"s_add_u32 s38, s38, {S_WAVE}")
    a("s_lshl_b32 s38, s38, 6")
    a(f"s_add_u32 s38, s38, {DIAGO}")
    a("s_mov_b64 exec, 1")
    a(f"buffer_store_dwordx4 v[0:3], {VZ}, {WSRD}, s38 offen")
    a(f"buffer_store_dwordx4 v[4:7], {VZ}, {WSRD}, s38 offen offset:16")
    a(f"buffer_store_dwordx4 v[8:11], {VZ}, {WSRD}, s38 offen offset:32")
a.label("L_end")
a("s_endpgm")

a.label("L_svc")
ws_srd()
a(f"s_load_dword s6, s[32:33], {EPO}")
a(f"s_cmp_eq_u32 {S_WAVE}, 9")
a("s_cbranch_scc1 L_b1")
a(f"s_cmp_eq_u32 {S_WAVE}, 10")
a("s_cbranch_scc1 L_b2")
a(f"s_cmp_eq_u32 {S_WAVE}, 11")
a("s_cbranch_scc1 L_gate")
a(f"s_cmp_lg_u32 {S_WAVE}, 8")
a("s_cbranch_scc1 L_wo")
a(f"s_lshl_b32 s38, {S_S}, 19")
a(f"s_lshl_b32 s39, {S_H}, 8")
a("s_add_u32 s38, s38, s39")
a("s_add_u32 s52, s14, s38")
a("s_addc_u32 s53, s15, 0")
a("s_sub_u32 s54, 0x400000, s38")
a("s_mov_b32 s55, 0x20000")
a(f"v_lshrrev_b32 v122, 4, {VL}")
a(f"v_and_b32 v121, 15, {VL}")
a("v_lshlrev_b32 v120, 17, v122")
a("v_lshl_add_u32 v120, v121, 4, v120")
a("v_lshlrev_b32 v119, 5, v122")
a(f"s_lshl_b32 s38, {S_S}, 7")
a("v_add_u32 v119, s38, v119")
a("global_load_dwordx4 v[64:67], v119, s[8:9]")
a("global_load_dwordx4 v[68:71], v119, s[8:9] offset:16")
for i in range(16):
    a(f"buffer_load_dwordx4 v[{4*i}:{4*i+3}], v120, {TSRD}, 0 offen nt")
    if i < 15: a("v_add_u32 v120, 0x2000, v120")
for j in range(8): a(f"v_mov_b32 v{104+j}, 0")
a("s_waitcnt vmcnt(16)")
for k in range(8):
    a(f"v_and_b32 v{72+4*k}, 0xffff, v{64+k}")
    a(f"v_lshlrev_b32 v{73+4*k}, 16, v{64+k}")
    a(f"v_lshrrev_b32 v{74+4*k}, 16, v{64+k}")
    a(f"v_and_b32 v{75+4*k}, 0xffff0000, v{64+k}")
for i in range(16):
    a(f"s_waitcnt vmcnt({15 - i})")
    for j in range(4):
        a(f"v_dot2c_f32_bf16 v{104+2*j}, v{72+2*i}, v{4*i+j}")
        a(f"v_dot2c_f32_bf16 v{105+2*j}, v{73+2*i}, v{4*i+j}")
rowreduce8(list(range(104, 112)), 104, 105)
a("s_waitcnt lgkmcnt(0)")
make_tags()
a("v_mov_b32 v106, s4")
a("v_mov_b32 v107, s5")
a("v_lshlrev_b32 v119, 6, v121")
a("v_lshl_add_u32 v119, v122, 4, v119")
a(f"s_lshl_b32 s79, {S_P}, 10")
a(f"buffer_store_dwordx4 v[104:107], v119, {WSRD}, s79 offen sc1")
stamp(9)
a(f"v_lshlrev_b32 v119, 4, {VL}")
a(f"s_lshl_b32 s79, {S_H}, 13")
a("s_add_u32 s38, s79, 4096")
a(f"s_mov_b32 s75, {TMO_MEM}")
a.label("L_qpoll")
for i in range(8):
    so = "s79" if i < 4 else "s38"
    a(f"buffer_load_dwordx4 v[{4*i}:{4*i+3}], v119, {WSRD}, {so} offen offset:{1024*(i%4)} sc1")
a("s_waitcnt vmcnt(0)")
tag_bad([4*i for i in range(8)], 32, 33)
a("s_cbranch_vccz L_qok")
timeout_check()
a("s_branch L_qpoll")
a.label("L_qok")
for j in range(2):
    a(f"v_add_f32 v{j}, v{j}, v{4+j}")
    a(f"v_add_f32 v{8+j}, v{8+j}, v{12+j}")
    a(f"v_add_f32 v{16+j}, v{16+j}, v{20+j}")
    a(f"v_add_f32 v{24+j}, v{24+j}, v{28+j}")
for j in range(2):
    a(f"v_add_f32 v{j}, v{j}, v{8+j}")
    a(f"v_add_f32 v{16+j}, v{16+j}, v{24+j}")
for j in range(2): a(f"v_add_f32 v{j}, v{j}, v{16+j}")
a("v_cvt_pk_bf16_f32 v0, v0, v1")
a(f"v_lshlrev_b32 v119, 2, {VL}")
a(f"ds_write_b32 v119, v0 offset:{L_Q}")
a("s_waitcnt lgkmcnt(0)")
lds_set_flag(L_FQ)
stamp(10)
a("s_branch L_wo2")

a.label("L_b1")
a("s_cmp_ge_u32 s2, 172")
a("s_cbranch_scc1 L_wo")
a("s_and_b32 s38, s2, 3")
a(f"s_mul_i32 s39, s38, {64*5504}")
a("s_lshr_b32 s79, s2, 2")
a("s_lshl_b32 s74, s79, 7")
a("s_add_u32 s39, s39, s74")
a("s_add_u32 s52, s20, s39")
a("s_addc_u32 s53, s21, 0")
a(f"s_sub_u32 s54, {512*2752}, s39")
a("s_mov_b32 s55, 0x20000")
a("s_add_u32 s48, s22, s39")
a("s_addc_u32 s49, s23, 0")
a("s_mov_b32 s50, s54")
a("s_mov_b32 s51, 0x20000")
a(f"v_lshrrev_b32 v122, 3, {VL}")
a(f"v_and_b32 v121, 7, {VL}")
a(f"v_mul_u32_u24 v120, {8*5504}, v122")
a("v_lshl_add_u32 v120, v121, 4, v120")
a("v_lshlrev_b32 v119, 5, v122")
a("s_lshl_b32 s38, s38, 8")
a("v_add_u32 v119, s38, v119")
a("global_load_dwordx4 v[64:67], v119, s[8:9]")
a("global_load_dwordx4 v[68:71], v119, s[8:9] offset:16")
a("s_lshl_b32 s74, s79, 6")
a("v_lshl_add_u32 v118, v121, 3, s74")
a("s_movk_i32 s74, 1375")
a("v_cmp_lt_u32 vcc, s74, v118")
a("v_cndmask_b32 v118, 0, 16, vcc")
nl = 0
for i in range(8):
    for srd, base in ((TSRD, 0), (WOSRD, 32)):
        if nl >= BD: a(f"s_waitcnt vmcnt({BD-1})")
        a(f"buffer_load_dwordx4 v[{base+4*i}:{base+4*i+3}], v120, {srd}, 0 offen nt"); nl += 1
    if i < 7: a("v_add_u32 v120, 5504, v120")
for j in range(16): a(f"v_mov_b32 v{96+j}, 0")
for i in range(8):
    a(f"v_lshrrev_b32 v117, v118, v{64+i}")
    a(f"v_and_b32 v{72+2*i}, 0xffff, v117")
    a(f"v_lshlrev_b32 v{73+2*i}, 16, v117")
a("s_waitcnt vmcnt(0)")
for i in range(8):
    for j in range(4):
        a(f"v_dot2c_f32_bf16 v{96+2*j}, v{72+2*i}, v{4*i+j}")
        a(f"v_dot2c_f32_bf16 v{97+2*j}, v{73+2*i}, v{4*i+j}")
        a(f"v_dot2c_f32_bf16 v{104+2*j}, v{72+2*i}, v{32+4*i+j}")
        a(f"v_dot2c_f32_bf16 v{105+2*j}, v{73+2*i}, v{32+4*i+j}")
for b in (96, 104):
    for j in range(4): a(f"v_permlane32_swap_b32 v{b+j}, v{b+4+j}")
for b in (96, 104):
    for j in range(4): a(f"v_add_f32 v{b+j}, v{b+j}, v{b+4+j}")
for b in (96, 104):
    for j in range(2): a(f"v_permlane16_swap_b32 v{b+j}, v{b+2+j}")
for b in (96, 104):
    for j in range(2): a(f"v_add_f32 v{b+j}, v{b+j}, v{b+2+j}")
for b in (96, 104):
    a(f"v_add_f32_dpp v{b}, v{b}, v{b} row_ror:8 row_mask:0xf bank_mask:0x3")
    a(f"v_add_f32_dpp v{b}, v{b+1}, v{b+1} row_ror:8 row_mask:0xf bank_mask:0xc")
a("s_waitcnt lgkmcnt(0)")
make_tags()
a("v_mov_b32 v97, v104")
a("v_mov_b32 v98, s4")
a("v_mov_b32 v99, s5")
a(f"v_bfe_u32 v100, {VL}, 5, 1")
a("v_lshlrev_b32 v100, 2, v100")
a(f"v_bfe_u32 v101, {VL}, 4, 1")
a("v_lshl_add_u32 v100, v101, 1, v100")
a(f"v_bfe_u32 v101, {VL}, 3, 1")
a("v_add_u32 v100, v100, v101")
a("v_lshl_add_u32 v100, v121, 3, v100")
a("v_lshlrev_b32 v100, 4, v100")
a("s_lshl_b32 s79, s2, 10")
a(f"s_add_u32 s79, s79, {BMB}")
a(f"buffer_store_dwordx4 v[96:99], v100, {WSRD}, s79 offen sc1")
stamp(9)
a("s_branch L_wo")

a.label("L_b2")
a("s_cmp_lt_u32 s2, 170")
a("s_cbranch_scc1 L_wo")
a("s_sub_u32 s79, s2, 170")
a("s_lshl_b32 s38, s79, 14")
a("s_add_u32 s52, s24, s38")
a("s_addc_u32 s53, s25, 0")
a("s_mov_b32 s54, 16384")
a("s_mov_b32 s55, 0x20000")
a(f"v_lshlrev_b32 v102, 4, {VL}")
for i in range(16):
    if i >= BD: a(f"s_waitcnt vmcnt({BD-1})")
    a(f"s_mov_b32 s67, {i*1024}")
    a(f"buffer_load_dwordx4 v[{4*i}:{4*i+3}], v102, {TSRD}, s67 offen nt")
a(f"v_and_b32 v114, 15, {VL}")
a("s_lshl_b32 s38, s79, 4")
a("v_add_u32 v114, s38, v114")
a("v_add_u32 v115, 1376, v114")
a(f"v_lshrrev_b32 v103, 4, {VL}")
a("v_lshlrev_b32 v103, 10, v103")
for r, d in ((114, 116), (115, 117)):
    a(f"v_lshrrev_b32 v{d}, 6, v{r}")
    a(f"v_lshlrev_b32 v{d}, 12, v{d}")
    a(f"v_and_b32 v{r}, 63, v{r}")
    a(f"v_lshl_add_u32 v{d}, v{r}, 4, v{d}")
    a(f"v_add_u32 v{d}, v{d}, v103")
a(f"s_mov_b32 s38, {BMB}")
a("s_waitcnt lgkmcnt(0)")
make_tags()
a(f"s_mov_b32 s75, {TMO_MEM}")
a.label("L_bpoll")
a(f"buffer_load_dwordx4 v[104:107], v116, {WSRD}, s38 offen sc1")
a(f"buffer_load_dwordx4 v[108:111], v117, {WSRD}, s38 offen sc1")
a("s_waitcnt vmcnt(0)")
tag_bad([104, 108], 100, 101)
a("s_cbranch_vccz L_bok")
timeout_check()
a("s_sleep 8")
a("s_branch L_bpoll")
a.label("L_bok")
a("v_add_f32 v112, v104, v108")
a("v_add_f32 v113, v105, v109")
for r in (112, 113):
    a(f"v_mov_b32 v100, v{r}")
    a(f"v_permlane16_swap_b32 v{r}, v100")
    a(f"v_add_f32 v{r}, v{r}, v100")
    a(f"v_mov_b32 v100, v{r}")
    a(f"v_permlane32_swap_b32 v{r}, v100")
    a(f"v_add_f32 v{r}, v{r}, v100")
rb16(112, 112)
rb16(113, 113)
a("v_mul_f32 v114, v112, v113")
a("v_cvt_pk_bf16_f32 v112, v114, 0")
a("v_cvt_pk_bf16_f32 v113, 0, v114")
for k in range(4):
    a(f"v_mov_b32 v{96+4*k}, 0")
    a(f"v_mov_b32 v{97+4*k}, 0")
    a(f"v_mov_b32 v{98+4*k}, s4")
    a(f"v_mov_b32 v{99+4*k}, s5")
for i in range(16):
    for j in range(4):
        a(f"v_dot2c_f32_bf16_dpp v{96+4*j}, v112, v{4*i+j} row_newbcast:{i} {DPPF}")
        a(f"v_dot2c_f32_bf16_dpp v{97+4*j}, v113, v{4*i+j} row_newbcast:{i} {DPPF}")
a(f"v_lshrrev_b32 v114, 1, {VL}")
a("v_lshlrev_b32 v114, 14, v114")
a(f"v_and_b32 v115, 1, {VL}")
a("v_lshl_add_u32 v114, v115, 6, v114")
a("s_lshl_b32 s38, s79, 7")
a(f"s_add_u32 s38, s38, {YBB}")
for k in range(4):
    a(f"buffer_store_dwordx4 v[{96+4*k}:{99+4*k}], v114, {WSRD}, s38 offen offset:{16*k} sc1")
stamp(9)
a("s_branch L_wo")

a.label("L_gate")
a("s_cmp_ge_u32 s2, 32")
a("s_cbranch_scc1 L_wo")
a(f"v_lshlrev_b32 v102, 4, {VL}")
a("global_load_dwordx4 v[8:11], v102, s[8:9]")
a("global_load_dwordx4 v[12:15], v102, s[26:27]")
a("v_mov_b32 v16, 0")
a("s_mov_b32 s38, 0x3f803f80")
a("s_waitcnt vmcnt(0)")
for j in range(4):
    a(f"v_lshlrev_b32 v17, 16, v{8+j}")
    a(f"v_lshlrev_b32 v18, 16, v{12+j}")
    a(f"v_and_b32 v19, 0xffff0000, v{8+j}")
    a(f"v_and_b32 v20, 0xffff0000, v{12+j}")
    a("v_mul_f32 v17, v17, v18")
    a("v_mul_f32 v19, v19, v20")
    a("v_cvt_pk_bf16_f32 v17, v17, v19")
    a("v_dot2c_f32_bf16 v16, s38, v17")
wave_reduce_to63("v_add_f32", 16)
a("v_readlane_b32 s38, v16, 63")
a("v_mov_b32 v16, s38")
rb16(16, 16)
a(f"v_mul_f32 v16, {f2u(-1.4426950408889634):#x}, v16")
a("v_exp_f32 v16, v16")
a("v_add_f32 v16, 1.0, v16")
a("v_rcp_f32 v16, v16")
rb16(16, 16)
a("v_sub_f32 v17, 1.0, v16")
rb16(17, 17)
a("s_mov_b64 exec, 1")
a(f"ds_write_b64 {VZ}, v[16:17] offset:{L_G}")
a("s_mov_b64 exec, -1")
a.label("L_wo")
lds_wait_flag(L_FQ, sleep=8)
a.label("L_wo2")
a(f"s_lshl_b32 s38, {S_H}, 17")
a("s_add_u32 s48, s16, s38")
a("s_addc_u32 s49, s17, 0")
a("s_mov_b32 s50, 0x20000")
a("s_mov_b32 s51, 0x20000")
a("s_mov_b32 s76, 0x05040100")
a("s_mov_b32 s77, 0x07060302")
a(f"v_lshrrev_b32 v122, 3, {VL}")
a(f"v_and_b32 v121, 7, {VL}")
a("v_lshlrev_b32 v120, 14, v122")
a("v_lshl_add_u32 v120, v121, 4, v120")
a(f"s_sub_u32 s74, {S_WAVE}, 8")
a("s_lshl_b32 s38, s74, 7")
a("v_add_u32 v120, s38, v120")
sw = Sched()
for i in range(16):
    if i >= WOD: sw.wait(f"W{i-WOD}")
    a(f"s_mov_b32 s67, {i*1024}")
    a(f"buffer_load_dwordx4 v[{4*i}:{4*i+3}], v120, {WOSRD}, s67 offen nt")
    sw.issue(f"W{i}")
a("v_lshlrev_b32 v105, 5, v122")
a(f"v_bfe_u32 v100, {VL}, 5, 1")
a("v_lshlrev_b32 v100, 1, v100")
a(f"v_bfe_u32 v101, {VL}, 4, 1")
a("v_add_u32 v100, v100, v101")
a("v_lshl_add_u32 v100, v121, 2, v100")
a("v_lshrrev_b32 v101, 3, v100")
a("v_lshlrev_b32 v101, 15, v101")
a("v_and_b32 v100, 7, v100")
a("v_lshl_add_u32 v104, v100, 4, v101")
a(f"v_bfe_u32 v101, {VL}, 3, 1")
a("v_lshl_or_b32 v104, v101, 31, v104")
a("s_lshl_b32 s38, s74, 17")
a(f"s_lshl_b32 s79, {S_P}, 7")
a("s_add_u32 s79, s79, s38")
a(f"s_add_u32 s79, s79, {YMB}")
a("s_waitcnt lgkmcnt(0)")
make_tags()
a("v_mov_b32 v90, s4")
a("v_mov_b32 v91, s5")
for k in range(8):
    sw.wait(f"W{2*k+1}")
    lo, hi = PMAP[k]
    A_, B_ = 8 * k, 8 * k + 4
    for j in range(4): a(f"v_perm_b32 v{lo+j}, v{B_+j}, v{A_+j}, s76")
    for j in range(4): a(f"v_perm_b32 v{hi+j}, v{B_+j}, v{A_+j}, s77")
for j in range(80, 88): a(f"v_mov_b32 v{j}, 0")
stamp(4)
a("s_branch L_barA")

src = header(256, 1024, LDS_SIZE) + kstart() + a.text() + kdesc(vgpr=128, sgpr=102 if DIAG else 80)
open(OUT, "w").write(src)
print("lines", len(a.lines), "lds", LDS_SIZE)
```

```python
import sys, struct
from emit import Asm
from hdr import *

DIAG = "-diag" in sys.argv
OUT = sys.argv[1]
def opt(name, default):
    for x in sys.argv:
        if x.startswith(f"-{name}="): return int(x.split("=")[1])
    return default
DEPTH = opt("depth", 3)
WOD = opt("wod", 2)
BD = opt("bd", 4)
NORED = "-nored" in sys.argv
DBG = "-dbg" in sys.argv
def f2u(x): return struct.unpack("<I", struct.pack("<f", x))[0]

QMB, BMB, MLB, EPO, YBB, YMB, DIAGO = 0x0, 0x40000, 0x70000, 0x7F000, 0x80000, 0x100000, 0x200000
WS_SIZE = 0x300000
L_FQ, L_MC = 8, 12
L_M, L_L, L_Q, L_OPK, L_G = 0x40, 0x80, 0x100, 0x200, 0x340
L_OP, OPS = 0x400, 544
L_RED = 0x400 + 8 * 544
LDS_SIZE = L_RED + 1024
SC = (128 ** -0.5) * 1.4426950408889634
TMO_LDS = 1 << 20
TMO_MEM = 1 << 16

a = Asm()
DPPF = "row_mask:0xf bank_mask:0xf"
S_WAVE, S_H, S_S, S_P = "s34", "s35", "s36", "s37"
KSRD, VSRD, WOSRD, TSRD, WSRD = "s[40:43]", "s[44:47]", "s[48:51]", "s[52:55]", "s[60:63]"
VL, VZ, VT = "v125", "v127", "v126"

def stamp(idx):
    if DIAG: a(f"s_memrealtime s[{80+2*idx}:{81+2*idx}]")
def timeout_check(lbl_abort="L_end"):
    a("s_sub_u32 s75, s75, 1")
    a("s_cmp_eq_u32 s75, 0")
    a(f"s_cbranch_scc1 {lbl_abort}")
_lc = [0]
def newlabel(p):
    _lc[0] += 1
    return f"L_{p}{_lc[0]}"
def lds_wait_flag(off, cmp_op="s_cmp_lg_u32", val="0", sleep=2):
    l0, l1 = newlabel("lw"), newlabel("lwd")
    a(f"s_mov_b32 s75, {TMO_LDS}")
    a.label(l0)
    a(f"ds_read_b32 {VT}, {VZ} offset:{off}")
    a("s_waitcnt lgkmcnt(0)")
    a(f"v_readfirstlane_b32 s38, {VT}")
    a(f"{cmp_op} s38, {val}")
    a(f"s_cbranch_scc1 {l1}")
    timeout_check()
    a(f"s_sleep {sleep}")
    a(f"s_branch {l0}")
    a.label(l1)
def lds_set_flag(off):
    a("s_mov_b64 exec, 1")
    a(f"v_mov_b32 {VT}, 1")
    a(f"ds_write_b32 {VZ}, {VT} offset:{off}")
    a("s_mov_b64 exec, -1")
def rowreduce8(acc, o0, o1):
    for j in range(4): a(f"v_permlane32_swap_b32 v{acc[j]}, v{acc[j+4]}")
    for j in range(4): a(f"v_add_f32 v{acc[j]}, v{acc[j]}, v{acc[j+4]}")
    a(f"v_permlane16_swap_b32 v{acc[0]}, v{acc[2]}")
    a(f"v_permlane16_swap_b32 v{acc[1]}, v{acc[3]}")
    a(f"v_add_f32 v{o0}, v{acc[0]}, v{acc[2]}")
    a(f"v_add_f32 v{o1}, v{acc[1]}, v{acc[3]}")
def row_allreduce(op, reg):
    for n in (8, 4, 2, 1):
        a(f"{op}_dpp v{reg}, v{reg}, v{reg} row_ror:{n} {DPPF}")
def wave_reduce_to63(op, reg):
    row_allreduce(op, reg)
    a(f"{op}_dpp v{reg}, v{reg}, v{reg} row_bcast:15 row_mask:0xa bank_mask:0xf")
    a(f"{op}_dpp v{reg}, v{reg}, v{reg} row_bcast:31 row_mask:0xc bank_mask:0xf")
def rb16(dst, src):
    a(f"v_cvt_pk_bf16_f32 v{dst}, 0, v{src}")
def red16(regs):
    for n in (4, 8):
        for r in regs: a(f"v_add_f32_dpp v{r}, v{r}, v{r} row_ror:{n} {DPPF}")
    a(f"v_permlane32_swap_b32 v{regs[0]}, v{regs[2]}")
    a(f"v_permlane32_swap_b32 v{regs[1]}, v{regs[3]}")
    a(f"v_add_f32 v{regs[0]}, v{regs[0]}, v{regs[2]}")
    a(f"v_add_f32 v{regs[1]}, v{regs[1]}, v{regs[3]}")
    a(f"v_permlane16_swap_b32 v{regs[0]}, v{regs[1]}")
    a(f"v_add_f32 v{regs[0]}, v{regs[0]}, v{regs[1]}")
def tag_bad(grans, acc, t):
    first = True
    for g in grans:
        if first:
            a(f"v_xor_b32 v{acc}, s4, v{g+2}")
            a(f"v_xor_b32 v{t}, s5, v{g+3}")
            a(f"v_or_b32 v{acc}, v{acc}, v{t}")
            first = False
        else:
            a(f"v_xor_b32 v{t}, s4, v{g+2}")
            a(f"v_or_b32 v{acc}, v{acc}, v{t}")
            a(f"v_xor_b32 v{t}, s5, v{g+3}")
            a(f"v_or_b32 v{acc}, v{acc}, v{t}")
    a(f"v_cmp_ne_u32 vcc, 0, v{acc}")
def make_tags():
    a("s_add_u32 s4, s6, 1")
    a("s_mul_i32 s5, s4, 0x9e3779b1")
    a("s_xor_b32 s5, s5, 0x5bd1e995")
class Sched:
    def __init__(self): self.issued = []; self.landed = -1
    def issue(self, name): self.issued.append(name)
    def wait(self, name):
        idx = self.issued.index(name)
        if idx > self.landed:
            a(f"s_waitcnt vmcnt({len(self.issued) - 1 - idx})")
            self.landed = idx
def ws_srd():
    a("s_mov_b32 s60, s32")
    a("s_mov_b32 s61, s33")
    a(f"s_mov_b32 s62, {WS_SIZE}")
    a("s_mov_b32 s63, 0x20000")

if DBG: a("s_memrealtime s[90:91]")
a("s_load_dwordx16 s[8:23], s[0:1], 0")
a("s_load_dwordx8 s[24:31], s[0:1], 64")
a("s_load_dwordx2 s[32:33], s[0:1], 96")
a("s_cmp_ge_u32 s2, 256")
a("s_cbranch_scc1 L_end")
a(f"v_and_b32 {VL}, 63, v0")
a(f"v_lshrrev_b32 {VT}, 6, v0")
a(f"v_mov_b32 {VZ}, 0")
a(f"v_readfirstlane_b32 {S_WAVE}, {VT}")
a("v_lshlrev_b32 v124, 4, v0")
a(f"s_and_b32 {S_H}, s2, 7")
a(f"s_lshl_b32 {S_H}, {S_H}, 2")
a(f"s_lshr_b32 {S_S}, s2, 3")
a(f"s_and_b32 {S_S}, {S_S}, 3")
a(f"s_or_b32 {S_H}, {S_H}, {S_S}")
a(f"s_lshr_b32 {S_S}, s2, 5")
a(f"s_lshl_b32 {S_P}, {S_H}, 3")
a(f"s_or_b32 {S_P}, {S_P}, {S_S}")
a(f"s_cmp_lg_u32 {S_WAVE}, 8")
a("s_cbranch_scc1 L_noinit")
a(f"v_lshlrev_b32 {VT}, 2, {VL}")
a(f"ds_write_b32 {VT}, {VZ}")
a("s_waitcnt lgkmcnt(0)")
a.label("L_noinit")
a("s_barrier")
a(f"s_lshl_b32 s38, {S_P}, 18")
a("s_mov_b32 s42, 0x40000")
a("s_mov_b32 s43, 0x20000")
a("s_mov_b32 s46, 0x40000")
a("s_mov_b32 s47, 0x20000")
a(f"s_cmp_ge_u32 {S_WAVE}, 8")
a("s_waitcnt lgkmcnt(0)")
if DIAG: a("s_memrealtime s[80:81]")
a("s_cbranch_scc1 L_svc")
a("s_add_u32 s40, s10, s38")
a("s_addc_u32 s41, s11, 0")
a("s_add_u32 s44, s12, s38")
a("s_addc_u32 s45, s13, 0")
sch = Sched()
NA, NB = 0, 64
def slot(kind, i):
    if kind == "K":
        if i < 16: return 4 * i
        if i < 24: return 32 + 4 * (i - 16)
        return 64 + 4 * (i - 24)
    else:
        if i < 8: return 64 + 4 * i
        if i < 16: return 4 * (i - 8)
        if i < 24: return 4 * (i - 16)
        return 32 + 4 * (i - 24)
order = [("K", i) for i in range(16)] + [("V", i) for i in range(16)] + [("K", i) for i in range(16, 32)] + [("V", i) for i in range(16, 32)]
def issue(n):
    k, i = order[n]
    if n >= DEPTH: sch.wait("%s%d" % order[n - DEPTH])
    d = slot(k, i)
    srd = KSRD if k == "K" else VSRD
    if i == 0:
        a(f"buffer_load_dwordx4 v[{d}:{d+3}], v124, {srd}, 0 offen nt")
    else:
        a(f"s_mov_b32 s67, {i*8192}")
        a(f"buffer_load_dwordx4 v[{d}:{d+3}], v124, {srd}, s67 offen nt")
    sch.issue(f"{k}{i}")
def qk(i):
    sch.wait(f"K{i}")
    d = slot("K", i)
    for j in range(4):
        a(f"v_dot2c_f32_bf16 v{96 + i % 16}, v{d+j}, v{112+j}")
def pv(j):
    sch.wait(f"V{j}")
    d = slot("V", j)
    for t in range(4):
        a(f"v_dot2c_f32_bf16_dpp v{116+2*t}, v110, v{d+t} row_newbcast:{j % 16} {DPPF}")
        a(f"v_dot2c_f32_bf16_dpp v{117+2*t}, v111, v{d+t} row_newbcast:{j % 16} {DPPF}")
def butterfly():
    for i in range(8):
        a(f"v_add_f32_dpp v{96+i}, v{96+i}, v{96+i} row_ror:8 row_mask:0xf bank_mask:0x3")
        a(f"v_add_f32_dpp v{96+i}, v{104+i}, v{104+i} row_ror:8 row_mask:0xf bank_mask:0xc")
    for i in range(4):
        a(f"v_add_f32_dpp v{96+i}, v{96+i}, v{96+i} row_ror:12 row_mask:0xf bank_mask:0x5")
        a(f"v_add_f32_dpp v{96+i}, v{100+i}, v{100+i} row_ror:4 row_mask:0xf bank_mask:0xa")
    for i in range(4):
        a(f"v_add_f32_dpp v{96+i}, v{96+i}, v{96+i} quad_perm:[2,3,0,1] {DPPF}")
    a("v_cndmask_b32 v96, v96, v98, s[68:69]")
    a("v_cndmask_b32 v97, v97, v99, s[68:69]")
    a(f"v_add_f32_dpp v96, v96, v96 quad_perm:[1,0,3,2] {DPPF}")
    a(f"v_add_f32_dpp v97, v97, v97 quad_perm:[1,0,3,2] {DPPF}")
    a("v_cndmask_b32 v96, v96, v97, s[70:71]")
    a("v_mul_f32 v96, s78, v96")
    a("v_mov_b32 v97, v96")
    wave_reduce_to63("v_max_f32", 97)
C = {n: [] for n in range(64)}
def at(n, f): C[n].append(f)
def setup_scalars():
    ws_srd()
    a("s_mov_b32 s68, 0xcccccccc")
    a("s_mov_b32 s69, 0xcccccccc")
    a("s_mov_b32 s70, 0xaaaaaaaa")
    a("s_mov_b32 s71, 0xaaaaaaaa")
    a(f"s_mov_b32 s78, {f2u(SC):#x}")
    a(f"s_load_dword s6, s[32:33], {EPO}")
    a(f"v_and_b32 v121, 15, {VL}")
    a("v_lshlrev_b32 v121, 4, v121")
    for i in range(16): a(f"v_mov_b32 v{96+i}, 0")
at(DEPTH - 1, setup_scalars)
def qwait():
    lds_wait_flag(L_FQ)
    a(f"ds_read_b128 v[112:115], v121 offset:{L_Q}")
    stamp(1)
    a("s_waitcnt lgkmcnt(0)")
at(19, qwait)
for n in range(20, 24):
    for i in range(4 * (n - 20), 4 * (n - 20) + 4): at(n, lambda i=i: qk(i))
def softmax0():
    butterfly()
    a("v_readlane_b32 s72, v97, 63")
    a("v_subrev_f32 v96, s72, v96")
    a("v_exp_f32 v96, v96")
    a("v_cvt_pk_bf16_f32 v110, v96, 0")
    a("v_cvt_pk_bf16_f32 v111, 0, v96")
    a("v_mov_b32 v97, v111")
    wave_reduce_to63("v_add_f32", 97)
    a("v_readlane_b32 s73, v97, 63")
    for j in range(8): a(f"v_mov_b32 v{116+j}, 0")
    make_tags()
    stamp(2)
at(24, softmax0)
for j in range(8): at(25 + j // 2, lambda j=j: pv(j))
for j in range(8): at(max(29, 24 + j + DEPTH), lambda j=j: pv(8 + j))
nz = max(29, 24 + 7 + DEPTH)
def zeroS():
    for i in range(16): a(f"v_mov_b32 v{96+i}, 0")
at(nz, zeroS)
for j in range(16): at(max(nz, 32 + j + DEPTH), lambda j=j: qk(16 + j))
ns = 32 + 15 + DEPTH
def softmax1():
    butterfly()
    a("v_readlane_b32 s74, v97, 63")
    a("v_mov_b32 v98, s72")
    a("v_max_f32 v98, s74, v98")
    a("v_sub_f32 v96, v96, v98")
    a("v_sub_f32 v99, s72, v98")
    a("v_exp_f32 v96, v96")
    a("v_exp_f32 v99, v99")
    a("v_readfirstlane_b32 s72, v98")
    a("v_cvt_pk_bf16_f32 v110, v96, 0")
    a("v_cvt_pk_bf16_f32 v111, 0, v96")
    for j in range(8): a(f"v_mul_f32 v{116+j}, v99, v{116+j}")
    a("s_mov_b64 exec, 1")
    a(f"s_lshl_b32 s38, {S_WAVE}, 2")
    a("v_mov_b32 v97, s38")
    a(f"ds_write_b32 v97, v98 offset:{L_M}")
    a("v_mov_b32 v98, 1")
    a(f"ds_add_u32 {VZ}, v98 offset:{L_MC}")
    a("s_mov_b64 exec, -1")
    a("v_mov_b32 v97, v111")
    wave_reduce_to63("v_add_f32", 97)
    a("v_mul_f32 v99, s73, v99")
    a("v_readlane_b32 s73, v97, 63")
    a("v_add_f32 v102, s73, v99")
    stamp(3)
at(ns, softmax1)
done = 16
for n in range(ns + 1, 64):
    k = 0
    while done < 32 and k < 2 and (48 + (done - 16) + DEPTH) <= n:
        at(n, lambda j=done: pv(j)); done += 1; k += 1
for n in range(64):
    issue(n)
    for f in C[n]: f()
lds_wait_flag(L_MC, "s_cmp_ge_u32", "8", sleep=1)
a(f"v_and_b32 v99, 7, {VL}")
a("v_lshlrev_b32 v99, 2, v99")
a(f"ds_read_b32 v100, v99 offset:{L_M}")
a(f"v_lshrrev_b32 v98, 4, {VL}")
a(f"v_and_b32 v103, 15, {VL}")
a("v_lshlrev_b32 v103, 5, v103")
a("v_lshl_add_u32 v103, v98, 3, v103")
a(f"s_mul_i32 s38, {S_WAVE}, {OPS}")
a("v_add_u32 v104, s38, v103")
a("s_waitcnt lgkmcnt(0)")
a(f"v_max_f32_dpp v100, v100, v100 quad_perm:[1,0,3,2] {DPPF}")
a(f"v_max_f32_dpp v100, v100, v100 quad_perm:[2,3,0,1] {DPPF}")
a(f"v_max_f32_dpp v100, v100, v100 row_half_mirror {DPPF}")
a("v_sub_f32 v101, s72, v100")
a("v_exp_f32 v101, v101")
a(f"s_lshl_b32 s38, {S_WAVE}, 2")
a("v_mov_b32 v99, s38")
a("v_mul_f32 v102, v102, v101")
a("s_mov_b64 exec, 1")
a(f"ds_write_b32 v99, v102 offset:{L_L}")
a("s_mov_b64 exec, -1")
for j in range(done, 32): pv(j)
stamp(4)
rowreduce8(list(range(116, 124)), 116, 117)
a("v_mul_f32 v116, v101, v116")
a("v_mul_f32 v117, v101, v117")
a(f"ds_write_b64 v104, v[116:117] offset:{L_OP}")
a.label("L_barA")
a(f"v_and_b32 v106, 7, {VL}")
a(f"v_mul_u32_u24 v106, {OPS}, v106")
a(f"v_bfe_u32 v107, {VL}, 3, 2")
a("v_lshl_add_u32 v106, v107, 3, v106")
a(f"s_lshl_b32 s38, {S_WAVE}, 5")
a("v_add_u32 v106, s38, v106")
a(f"s_lshl_b32 s38, {S_WAVE}, 4")
a("v_lshl_add_u32 v107, v107, 2, s38")
a("s_mov_b32 s38, 0x01010101")
a("s_mov_b32 s39, 0")
a("s_waitcnt lgkmcnt(0)")
stamp(5)
a("s_barrier")
a(f"ds_read_b64 v[108:109], v106 offset:{L_OP}")
a("s_waitcnt lgkmcnt(0)")
for m in ("quad_perm:[1,0,3,2]", "quad_perm:[2,3,0,1]", "row_half_mirror"):
    a(f"v_add_f32_dpp v108, v108, v108 {m} {DPPF}")
    a(f"v_add_f32_dpp v109, v109, v109 {m} {DPPF}")
a("v_cvt_pk_bf16_f32 v108, v108, v109")
a("s_mov_b64 exec, s[38:39]")
a(f"ds_write_b32 v107, v108 offset:{L_OPK}")
a("s_mov_b64 exec, -1")
a("s_waitcnt lgkmcnt(0)")
a("s_barrier")
a(f"s_cmp_ge_u32 {S_WAVE}, 8")
a("s_cbranch_scc1 L_yphase")
a(f"s_cmp_lg_u32 {S_WAVE}, 0")
a("s_cbranch_scc1 L_pubdone")
a(f"v_and_b32 v99, 7, {VL}")
a("v_lshlrev_b32 v99, 2, v99")
a(f"ds_read_b32 v1, v99 offset:{L_L}")
a("v_mov_b32 v2, s4")
a("v_mov_b32 v3, s5")
a("v_mov_b32 v0, v100")
a("s_waitcnt lgkmcnt(0)")
for m in ("quad_perm:[1,0,3,2]", "quad_perm:[2,3,0,1]", "row_half_mirror"):
    a(f"v_add_f32_dpp v1, v1, v1 {m} {DPPF}")
a(f"s_lshl_b32 s38, {S_P}, 4")
a(f"s_add_u32 s38, s38, {MLB}")
a("s_mov_b64 exec, 1")
a(f"buffer_store_dwordx4 v[0:3], {VZ}, {WSRD}, s38 offen sc1")
a("s_mov_b64 exec, -1")
a("s_branch L_pubdone")
a.label("L_yphase")
a(f"ds_read_b128 v[72:75], v105 offset:{L_OPK}")
a(f"ds_read_b128 v[76:79], v105 offset:{L_OPK+16}")
a("s_waitcnt lgkmcnt(0)")
PMAP = {}
spare = 64
for k in range(8):
    A_, B_ = 8 * k, 8 * k + 4
    PMAP[k] = (spare, B_)
    spare = A_
for k in range(8):
    lo, hi = PMAP[k]
    for j in range(4):
        a(f"v_dot2c_f32_bf16 v{80+2*j}, v{72+k}, v{lo+j}")
        a(f"v_dot2c_f32_bf16 v{81+2*j}, v{72+k}, v{hi+j}")
rowreduce8(list(range(80, 88)), 88, 89)
a(f"v_add_f32_dpp v88, v88, v88 row_ror:8 {DPPF}")
a(f"v_add_f32_dpp v89, v89, v89 row_ror:8 {DPPF}")
a(f"buffer_store_dwordx4 v[88:91], v104, {WSRD}, s79 offen sc1")
stamp(6)
a.label("L_pubdone")
a("s_cmp_ge_u32 s2, 0" if NORED else "s_cmp_ge_u32 s2, 32")
a("s_cbranch_scc1 L_fin")
a(f"s_lshl_b32 s38, {S_WAVE}, 6")
a(f"v_add_u32 v99, s38, {VL}")
a("v_lshlrev_b32 v98, 5, v99")
a("v_lshrrev_b32 v97, 2, v99")
a("v_lshlrev_b32 v97, 4, v97")
a("s_lshl_b32 s38, s2, 14")
a(f"s_add_u32 s38, s38, {YBB}")
a("s_add_u32 s52, s32, s38")
a("s_addc_u32 s53, s33, 0")
a(f"s_mov_b32 s54, {86*128}")
a("s_mov_b32 s55, 0x20000")
a("s_lshl_b32 s38, s2, 15")
a(f"s_add_u32 s38, s38, {YMB}")
a(f"s_mov_b32 s39, {MLB}")
a(f"ds_read_b64 v[24:25], {VZ} offset:{L_G}")
a("s_mov_b32 s79, 0x158")
a("v_cmp_gt_u32 s[72:73], s79, v99")
a(f"s_mov_b32 s75, {TMO_MEM}")
a.label("L_mlpoll")
a(f"buffer_load_dwordx4 v[8:11], v97, {WSRD}, s39 offen sc1")
a("s_waitcnt vmcnt(0)")
tag_bad([8], 20, 21)
a("s_cbranch_vccz L_mlok")
timeout_check()
a("s_sleep 2")
a("s_branch L_mlpoll")
a.label("L_mlok")
a.label("L_rpoll")
a(f"buffer_load_dwordx4 v[0:3], v98, {WSRD}, s38 offen sc1")
a(f"buffer_load_dwordx4 v[4:7], v98, {WSRD}, s38 offen offset:16 sc1")
a(f"buffer_load_dwordx4 v[12:15], v98, {TSRD}, 0 offen sc1")
a(f"buffer_load_dwordx4 v[16:19], v98, {TSRD}, 0 offen offset:16 sc1")
a("v_mov_b32 v26, v8")
a(f"v_max_f32_dpp v26, v26, v26 row_ror:4 {DPPF}")
a(f"v_max_f32_dpp v26, v26, v26 row_ror:8 {DPPF}")
a("v_mov_b32 v27, v26")
a("v_permlane16_swap_b32 v26, v27")
a("v_max_f32 v26, v26, v27")
a("v_sub_f32 v26, v8, v26")
a("v_exp_f32 v26, v26")
a("v_mul_f32 v28, v26, v9")
a(f"v_add_f32_dpp v28, v28, v28 row_ror:4 {DPPF}")
a(f"v_add_f32_dpp v28, v28, v28 row_ror:8 {DPPF}")
a("v_mov_b32 v27, v28")
a("v_permlane16_swap_b32 v28, v27")
a("v_add_f32 v28, v28, v27")
a("v_rcp_f32 v28, v28")
a("s_waitcnt lgkmcnt(0)")
a("v_mul_f32 v26, v26, v24")
a("v_mul_f32 v26, v26, v28")
a("s_waitcnt vmcnt(0)")
tag_bad([12, 16], 20, 21)
a("s_and_b64 s[76:77], vcc, s[72:73]")
tag_bad([0, 4], 20, 21)
a("s_or_b64 s[76:77], s[76:77], vcc")
a("s_cmp_eq_u64 s[76:77], 0")
a("s_cbranch_scc1 L_rok")
timeout_check()
a("s_branch L_rpoll")
a.label("L_rok")
stamp(7)
a("v_mul_f32 v12, v25, v12")
a("v_mul_f32 v13, v25, v13")
a("v_mul_f32 v16, v25, v16")
a("v_mul_f32 v17, v25, v17")
a("v_fma_f32 v2, v26, v4, v16")
a("v_fma_f32 v3, v26, v5, v17")
a("v_fma_f32 v0, v26, v0, v12")
a("v_fma_f32 v1, v26, v1, v13")
red16([0, 1, 2, 3])
a(f"v_and_b32 v8, 3, {VL}")
a("v_lshlrev_b32 v8, 4, v8")
a(f"v_lshrrev_b32 v9, 4, {VL}")
a("v_lshl_add_u32 v8, v9, 2, v8")
a(f"s_lshl_b32 s38, {S_WAVE}, 6")
a("v_add_u32 v9, s38, v8")
a("s_mov_b32 s38, 0x000f000f")
a("s_mov_b32 s39, 0x000f000f")
a("s_mov_b64 exec, s[38:39]")
a(f"ds_write_b32 v9, v0 offset:{L_RED}")
a("s_mov_b64 exec, -1")
a("s_waitcnt lgkmcnt(0)")
a("s_barrier")
a(f"s_cmp_lg_u32 {S_WAVE}, 0")
a("s_cbranch_scc1 L_fin")
a(f"v_lshlrev_b32 v9, 4, {VL}")
a(f"ds_read_b128 v[0:3], v9 offset:{L_RED}")
a("v_lshrrev_b32 v8, 1, v8")
a("s_lshl_b32 s79, s2, 5")
a("s_mov_b32 s52, s28")
a("s_mov_b32 s53, s29")
a("s_mov_b32 s54, 1024")
a("s_mov_b32 s55, 0x20000")
a("v_mov_b32 v4, s4")
a("s_waitcnt lgkmcnt(0)")
red16([0, 1, 2, 3])
a("v_cvt_pk_bf16_f32 v0, v0, 0")
a("s_mov_b64 exec, s[38:39]")
a(f"buffer_store_short v0, v8, {TSRD}, s79 offen")
a("s_cmp_lg_u32 s2, 0")
a("s_cbranch_scc1 L_fin")
a("s_mov_b64 exec, 1")
a(f"s_mov_b32 s38, {EPO}")
a(f"buffer_store_dword v4, {VZ}, {WSRD}, s38 offen sc1")
a.label("L_fin")
a("s_mov_b64 exec, -1")
if DIAG:
    a("s_memrealtime s[96:97]")
    a("s_waitcnt lgkmcnt(0)")
    for k in range(11): a(f"v_mov_b32 v{k}, s{80+2*k}")
    a("s_lshl_b32 s38, s2, 4")
    a(f"s_add_u32 s38, s38, {S_WAVE}")
    a("s_lshl_b32 s38, s38, 6")
    a(f"s_add_u32 s38, s38, {DIAGO}")
    a("s_mov_b64 exec, 1")
    a(f"buffer_store_dwordx4 v[0:3], {VZ}, {WSRD}, s38 offen")
    a(f"buffer_store_dwordx4 v[4:7], {VZ}, {WSRD}, s38 offen offset:16")
    a(f"buffer_store_dwordx4 v[8:11], {VZ}, {WSRD}, s38 offen offset:32")
if DBG:
    a("s_memrealtime s[92:93]")
    a("s_waitcnt lgkmcnt(0)")
    a("s_not_b32 s90, s90")
    a("v_mov_b32 v0, s92")
    a("v_mov_b32 v1, s90")
    a("s_mov_b32 s52, s30")
    a("s_mov_b32 s53, s31")
    a("s_mov_b32 s54, 256")
    a("s_mov_b32 s55, 0x20000")
    a("s_mov_b64 exec, 1")
    a(f"buffer_atomic_umax v0, {VZ}, {TSRD}, 0 offen sc1")
    a(f"buffer_atomic_umax v1, {VZ}, {TSRD}, 0 offen offset:4 sc1")
a.label("L_end")
a("s_endpgm")

a.label("L_svc")
ws_srd()
a(f"s_load_dword s6, s[32:33], {EPO}")
a(f"s_cmp_eq_u32 {S_WAVE}, 9")
a("s_cbranch_scc1 L_b1")
a(f"s_cmp_eq_u32 {S_WAVE}, 10")
a("s_cbranch_scc1 L_b2")
a(f"s_cmp_eq_u32 {S_WAVE}, 11")
a("s_cbranch_scc1 L_gate")
a(f"s_cmp_lg_u32 {S_WAVE}, 8")
a("s_cbranch_scc1 L_wo")
a(f"s_lshl_b32 s38, {S_S}, 19")
a(f"s_lshl_b32 s39, {S_H}, 8")
a("s_add_u32 s38, s38, s39")
a("s_add_u32 s52, s14, s38")
a("s_addc_u32 s53, s15, 0")
a("s_sub_u32 s54, 0x400000, s38")
a("s_mov_b32 s55, 0x20000")
a(f"v_lshrrev_b32 v122, 4, {VL}")
a(f"v_and_b32 v121, 15, {VL}")
a("v_lshlrev_b32 v120, 17, v122")
a("v_lshl_add_u32 v120, v121, 4, v120")
a("v_lshlrev_b32 v119, 5, v122")
a(f"s_lshl_b32 s38, {S_S}, 7")
a("v_add_u32 v119, s38, v119")
a("global_load_dwordx4 v[64:67], v119, s[8:9]")
a("global_load_dwordx4 v[68:71], v119, s[8:9] offset:16")
for i in range(16):
    a(f"buffer_load_dwordx4 v[{4*i}:{4*i+3}], v120, {TSRD}, 0 offen nt")
    if i < 15: a("v_add_u32 v120, 0x2000, v120")
for j in range(8): a(f"v_mov_b32 v{104+j}, 0")
a("s_waitcnt vmcnt(16)")
for k in range(8):
    a(f"v_and_b32 v{72+4*k}, 0xffff, v{64+k}")
    a(f"v_lshlrev_b32 v{73+4*k}, 16, v{64+k}")
    a(f"v_lshrrev_b32 v{74+4*k}, 16, v{64+k}")
    a(f"v_and_b32 v{75+4*k}, 0xffff0000, v{64+k}")
for i in range(16):
    a(f"s_waitcnt vmcnt({15 - i})")
    for j in range(4):
        a(f"v_dot2c_f32_bf16 v{104+2*j}, v{72+2*i}, v{4*i+j}")
        a(f"v_dot2c_f32_bf16 v{105+2*j}, v{73+2*i}, v{4*i+j}")
rowreduce8(list(range(104, 112)), 104, 105)
a("s_waitcnt lgkmcnt(0)")
make_tags()
a("v_mov_b32 v106, s4")
a("v_mov_b32 v107, s5")
a("v_lshlrev_b32 v119, 6, v121")
a("v_lshl_add_u32 v119, v122, 4, v119")
a(f"s_lshl_b32 s79, {S_P}, 10")
a(f"buffer_store_dwordx4 v[104:107], v119, {WSRD}, s79 offen sc1")
stamp(9)
a(f"v_lshlrev_b32 v119, 4, {VL}")
a(f"s_lshl_b32 s79, {S_H}, 13")
a("s_add_u32 s38, s79, 4096")
a(f"s_mov_b32 s75, {TMO_MEM}")
a.label("L_qpoll")
for i in range(8):
    so = "s79" if i < 4 else "s38"
    a(f"buffer_load_dwordx4 v[{4*i}:{4*i+3}], v119, {WSRD}, {so} offen offset:{1024*(i%4)} sc1")
a("s_waitcnt vmcnt(0)")
tag_bad([4*i for i in range(8)], 32, 33)
a("s_cbranch_vccz L_qok")
timeout_check()
a("s_branch L_qpoll")
a.label("L_qok")
for j in range(2):
    a(f"v_add_f32 v{j}, v{j}, v{4+j}")
    a(f"v_add_f32 v{8+j}, v{8+j}, v{12+j}")
    a(f"v_add_f32 v{16+j}, v{16+j}, v{20+j}")
    a(f"v_add_f32 v{24+j}, v{24+j}, v{28+j}")
for j in range(2):
    a(f"v_add_f32 v{j}, v{j}, v{8+j}")
    a(f"v_add_f32 v{16+j}, v{16+j}, v{24+j}")
for j in range(2): a(f"v_add_f32 v{j}, v{j}, v{16+j}")
a("v_cvt_pk_bf16_f32 v0, v0, v1")
a(f"v_lshlrev_b32 v119, 2, {VL}")
a(f"ds_write_b32 v119, v0 offset:{L_Q}")
a("s_waitcnt lgkmcnt(0)")
lds_set_flag(L_FQ)
stamp(10)
a("s_branch L_wo2")

a.label("L_b1")
a("s_cmp_ge_u32 s2, 172")
a("s_cbranch_scc1 L_wo")
a("s_and_b32 s38, s2, 3")
a(f"s_mul_i32 s39, s38, {64*5504}")
a("s_lshr_b32 s79, s2, 2")
a("s_lshl_b32 s74, s79, 7")
a("s_add_u32 s39, s39, s74")
a("s_add_u32 s52, s20, s39")
a("s_addc_u32 s53, s21, 0")
a(f"s_sub_u32 s54, {512*2752}, s39")
a("s_mov_b32 s55, 0x20000")
a("s_add_u32 s48, s22, s39")
a("s_addc_u32 s49, s23, 0")
a("s_mov_b32 s50, s54")
a("s_mov_b32 s51, 0x20000")
a(f"v_lshrrev_b32 v122, 3, {VL}")
a(f"v_and_b32 v121, 7, {VL}")
a(f"v_mul_u32_u24 v120, {8*5504}, v122")
a("v_lshl_add_u32 v120, v121, 4, v120")
a("v_lshlrev_b32 v119, 5, v122")
a("s_lshl_b32 s38, s38, 8")
a("v_add_u32 v119, s38, v119")
a("global_load_dwordx4 v[64:67], v119, s[8:9]")
a("global_load_dwordx4 v[68:71], v119, s[8:9] offset:16")
a("s_lshl_b32 s74, s79, 6")
a("v_lshl_add_u32 v118, v121, 3, s74")
a("s_movk_i32 s74, 1375")
a("v_cmp_lt_u32 vcc, s74, v118")
a("v_cndmask_b32 v118, 0, 16, vcc")
nl = 0
for i in range(8):
    for srd, base in ((TSRD, 0), (WOSRD, 32)):
        if nl >= BD: a(f"s_waitcnt vmcnt({BD-1})")
        a(f"buffer_load_dwordx4 v[{base+4*i}:{base+4*i+3}], v120, {srd}, 0 offen nt"); nl += 1
    if i < 7: a("v_add_u32 v120, 5504, v120")
for j in range(16): a(f"v_mov_b32 v{96+j}, 0")
for i in range(8):
    a(f"v_lshrrev_b32 v117, v118, v{64+i}")
    a(f"v_and_b32 v{72+2*i}, 0xffff, v117")
    a(f"v_lshlrev_b32 v{73+2*i}, 16, v117")
a("s_waitcnt vmcnt(0)")
for i in range(8):
    for j in range(4):
        a(f"v_dot2c_f32_bf16 v{96+2*j}, v{72+2*i}, v{4*i+j}")
        a(f"v_dot2c_f32_bf16 v{97+2*j}, v{73+2*i}, v{4*i+j}")
        a(f"v_dot2c_f32_bf16 v{104+2*j}, v{72+2*i}, v{32+4*i+j}")
        a(f"v_dot2c_f32_bf16 v{105+2*j}, v{73+2*i}, v{32+4*i+j}")
for b in (96, 104):
    for j in range(4): a(f"v_permlane32_swap_b32 v{b+j}, v{b+4+j}")
for b in (96, 104):
    for j in range(4): a(f"v_add_f32 v{b+j}, v{b+j}, v{b+4+j}")
for b in (96, 104):
    for j in range(2): a(f"v_permlane16_swap_b32 v{b+j}, v{b+2+j}")
for b in (96, 104):
    for j in range(2): a(f"v_add_f32 v{b+j}, v{b+j}, v{b+2+j}")
for b in (96, 104):
    a(f"v_add_f32_dpp v{b}, v{b}, v{b} row_ror:8 row_mask:0xf bank_mask:0x3")
    a(f"v_add_f32_dpp v{b}, v{b+1}, v{b+1} row_ror:8 row_mask:0xf bank_mask:0xc")
a("s_waitcnt lgkmcnt(0)")
make_tags()
a("v_mov_b32 v97, v104")
a("v_mov_b32 v98, s4")
a("v_mov_b32 v99, s5")
a(f"v_bfe_u32 v100, {VL}, 5, 1")
a("v_lshlrev_b32 v100, 2, v100")
a(f"v_bfe_u32 v101, {VL}, 4, 1")
a("v_lshl_add_u32 v100, v101, 1, v100")
a(f"v_bfe_u32 v101, {VL}, 3, 1")
a("v_add_u32 v100, v100, v101")
a("v_lshl_add_u32 v100, v121, 3, v100")
a("v_lshlrev_b32 v100, 4, v100")
a("s_lshl_b32 s79, s2, 10")
a(f"s_add_u32 s79, s79, {BMB}")
a(f"buffer_store_dwordx4 v[96:99], v100, {WSRD}, s79 offen sc1")
stamp(9)
a("s_branch L_wo")

a.label("L_b2")
a("s_cmp_lt_u32 s2, 170")
a("s_cbranch_scc1 L_wo")
a("s_sub_u32 s79, s2, 170")
a("s_lshl_b32 s38, s79, 14")
a("s_add_u32 s52, s24, s38")
a("s_addc_u32 s53, s25, 0")
a("s_mov_b32 s54, 16384")
a("s_mov_b32 s55, 0x20000")
a(f"v_lshlrev_b32 v102, 4, {VL}")
for i in range(16):
    if i >= BD: a(f"s_waitcnt vmcnt({BD-1})")
    a(f"s_mov_b32 s67, {i*1024}")
    a(f"buffer_load_dwordx4 v[{4*i}:{4*i+3}], v102, {TSRD}, s67 offen nt")
a(f"v_and_b32 v114, 15, {VL}")
a("s_lshl_b32 s38, s79, 4")
a("v_add_u32 v114, s38, v114")
a("v_add_u32 v115, 1376, v114")
a(f"v_lshrrev_b32 v103, 4, {VL}")
a("v_lshlrev_b32 v103, 10, v103")
for r, d in ((114, 116), (115, 117)):
    a(f"v_lshrrev_b32 v{d}, 6, v{r}")
    a(f"v_lshlrev_b32 v{d}, 12, v{d}")
    a(f"v_and_b32 v{r}, 63, v{r}")
    a(f"v_lshl_add_u32 v{d}, v{r}, 4, v{d}")
    a(f"v_add_u32 v{d}, v{d}, v103")
a(f"s_mov_b32 s38, {BMB}")
a("s_waitcnt lgkmcnt(0)")
make_tags()
a(f"s_mov_b32 s75, {TMO_MEM}")
a.label("L_bpoll")
a(f"buffer_load_dwordx4 v[104:107], v116, {WSRD}, s38 offen sc1")
a(f"buffer_load_dwordx4 v[108:111], v117, {WSRD}, s38 offen sc1")
a("s_waitcnt vmcnt(0)")
tag_bad([104, 108], 100, 101)
a("s_cbranch_vccz L_bok")
timeout_check()
a("s_sleep 8")
a("s_branch L_bpoll")
a.label("L_bok")
a("v_add_f32 v112, v104, v108")
a("v_add_f32 v113, v105, v109")
for r in (112, 113):
    a(f"v_mov_b32 v100, v{r}")
    a(f"v_permlane16_swap_b32 v{r}, v100")
    a(f"v_add_f32 v{r}, v{r}, v100")
    a(f"v_mov_b32 v100, v{r}")
    a(f"v_permlane32_swap_b32 v{r}, v100")
    a(f"v_add_f32 v{r}, v{r}, v100")
rb16(112, 112)
rb16(113, 113)
a("v_mul_f32 v114, v112, v113")
a("v_cvt_pk_bf16_f32 v112, v114, 0")
a("v_cvt_pk_bf16_f32 v113, 0, v114")
for k in range(4):
    a(f"v_mov_b32 v{96+4*k}, 0")
    a(f"v_mov_b32 v{97+4*k}, 0")
    a(f"v_mov_b32 v{98+4*k}, s4")
    a(f"v_mov_b32 v{99+4*k}, s5")
for i in range(16):
    for j in range(4):
        a(f"v_dot2c_f32_bf16_dpp v{96+4*j}, v112, v{4*i+j} row_newbcast:{i} {DPPF}")
        a(f"v_dot2c_f32_bf16_dpp v{97+4*j}, v113, v{4*i+j} row_newbcast:{i} {DPPF}")
a(f"v_lshrrev_b32 v114, 1, {VL}")
a("v_lshlrev_b32 v114, 14, v114")
a(f"v_and_b32 v115, 1, {VL}")
a("v_lshl_add_u32 v114, v115, 6, v114")
a("s_lshl_b32 s38, s79, 7")
a(f"s_add_u32 s38, s38, {YBB}")
for k in range(4):
    a(f"buffer_store_dwordx4 v[{96+4*k}:{99+4*k}], v114, {WSRD}, s38 offen offset:{16*k} sc1")
stamp(9)
a("s_branch L_wo")

a.label("L_gate")
a("s_cmp_ge_u32 s2, 32")
a("s_cbranch_scc1 L_wo")
a(f"v_lshlrev_b32 v102, 4, {VL}")
a("global_load_dwordx4 v[8:11], v102, s[8:9]")
a("global_load_dwordx4 v[12:15], v102, s[26:27]")
a("v_mov_b32 v16, 0")
a("s_mov_b32 s38, 0x3f803f80")
a("s_waitcnt vmcnt(0)")
for j in range(4):
    a(f"v_lshlrev_b32 v17, 16, v{8+j}")
    a(f"v_lshlrev_b32 v18, 16, v{12+j}")
    a(f"v_and_b32 v19, 0xffff0000, v{8+j}")
    a(f"v_and_b32 v20, 0xffff0000, v{12+j}")
    a("v_mul_f32 v17, v17, v18")
    a("v_mul_f32 v19, v19, v20")
    a("v_cvt_pk_bf16_f32 v17, v17, v19")
    a("v_dot2c_f32_bf16 v16, s38, v17")
wave_reduce_to63("v_add_f32", 16)
a("v_readlane_b32 s38, v16, 63")
a("v_mov_b32 v16, s38")
rb16(16, 16)
a(f"v_mul_f32 v16, {f2u(-1.4426950408889634):#x}, v16")
a("v_exp_f32 v16, v16")
a("v_add_f32 v16, 1.0, v16")
a("v_rcp_f32 v16, v16")
rb16(16, 16)
a("v_sub_f32 v17, 1.0, v16")
rb16(17, 17)
a("s_mov_b64 exec, 1")
a(f"ds_write_b64 {VZ}, v[16:17] offset:{L_G}")
a("s_mov_b64 exec, -1")
a.label("L_wo")
lds_wait_flag(L_FQ, sleep=8)
a.label("L_wo2")
a(f"s_lshl_b32 s38, {S_H}, 17")
a("s_add_u32 s48, s16, s38")
a("s_addc_u32 s49, s17, 0")
a("s_mov_b32 s50, 0x20000")
a("s_mov_b32 s51, 0x20000")
a("s_mov_b32 s76, 0x05040100")
a("s_mov_b32 s77, 0x07060302")
a(f"v_lshrrev_b32 v122, 3, {VL}")
a(f"v_and_b32 v121, 7, {VL}")
a("v_lshlrev_b32 v120, 14, v122")
a("v_lshl_add_u32 v120, v121, 4, v120")
a(f"s_sub_u32 s74, {S_WAVE}, 8")
a("s_lshl_b32 s38, s74, 7")
a("v_add_u32 v120, s38, v120")
sw = Sched()
for i in range(16):
    if i >= WOD: sw.wait(f"W{i-WOD}")
    a(f"s_mov_b32 s67, {i*1024}")
    a(f"buffer_load_dwordx4 v[{4*i}:{4*i+3}], v120, {WOSRD}, s67 offen nt")
    sw.issue(f"W{i}")
a("v_lshlrev_b32 v105, 5, v122")
a(f"v_bfe_u32 v100, {VL}, 5, 1")
a("v_lshlrev_b32 v100, 1, v100")
a(f"v_bfe_u32 v101, {VL}, 4, 1")
a("v_add_u32 v100, v100, v101")
a("v_lshl_add_u32 v100, v121, 2, v100")
a("v_lshrrev_b32 v101, 3, v100")
a("v_lshlrev_b32 v101, 15, v101")
a("v_and_b32 v100, 7, v100")
a("v_lshl_add_u32 v104, v100, 4, v101")
a(f"v_bfe_u32 v101, {VL}, 3, 1")
a("v_lshl_or_b32 v104, v101, 31, v104")
a("s_lshl_b32 s38, s74, 17")
a(f"s_lshl_b32 s79, {S_P}, 7")
a("s_add_u32 s79, s79, s38")
a(f"s_add_u32 s79, s79, {YMB}")
a("s_waitcnt lgkmcnt(0)")
make_tags()
a("v_mov_b32 v90, s4")
a("v_mov_b32 v91, s5")
for k in range(8):
    sw.wait(f"W{2*k+1}")
    lo, hi = PMAP[k]
    A_, B_ = 8 * k, 8 * k + 4
    for j in range(4): a(f"v_perm_b32 v{lo+j}, v{B_+j}, v{A_+j}, s76")
    for j in range(4): a(f"v_perm_b32 v{hi+j}, v{B_+j}, v{A_+j}, s77")
for j in range(80, 88): a(f"v_mov_b32 v{j}, 0")
stamp(4)
a("s_branch L_barA")

src = header(256, 1024, LDS_SIZE) + kstart() + a.text() + kdesc(vgpr=128, sgpr=102 if (DIAG or DBG) else 80)
open(OUT, "w").write(src)
print("lines", len(a.lines), "lds", LDS_SIZE)
```

```python
import sys, struct
from emit import Asm
from hdr import *

DIAG = "-diag" in sys.argv
OUT = sys.argv[1]
def opt(name, default):
    for x in sys.argv:
        if x.startswith(f"-{name}="): return int(x.split("=")[1])
    return default
DEPTH = opt("depth", 3)
WOD = opt("wod", 2)
BD = opt("bd", 4)
NORED = "-nored" in sys.argv
DBG = "-dbg" in sys.argv
def f2u(x): return struct.unpack("<I", struct.pack("<f", x))[0]

QMB, BMB, MLB, EPO, YBB, YMB, DIAGO = 0x0, 0x40000, 0x70000, 0x7F000, 0x80000, 0x100000, 0x200000
WS_SIZE = 0x300000
L_FQ, L_MC = 8, 12
L_M, L_L, L_Q, L_OPK, L_G = 0x40, 0x80, 0x100, 0x200, 0x340
L_OP, OPS = 0x400, 544
L_RED = 0x400 + 8 * 544
LDS_SIZE = L_RED + 1024
SC = (128 ** -0.5) * 1.4426950408889634
TMO_LDS = 1 << 20
TMO_MEM = 1 << 16

a = Asm()
DPPF = "row_mask:0xf bank_mask:0xf"
S_WAVE, S_H, S_S, S_P = "s34", "s35", "s36", "s37"
KSRD, VSRD, WOSRD, TSRD, WSRD = "s[40:43]", "s[44:47]", "s[48:51]", "s[52:55]", "s[60:63]"
VL, VZ, VT = "v125", "v127", "v126"

def stamp(idx):
    if DIAG: a(f"s_memrealtime s[{80+2*idx}:{81+2*idx}]")
def timeout_check(lbl_abort="L_end"):
    a("s_sub_u32 s75, s75, 1")
    a("s_cmp_eq_u32 s75, 0")
    a(f"s_cbranch_scc1 {lbl_abort}")
_lc = [0]
def newlabel(p):
    _lc[0] += 1
    return f"L_{p}{_lc[0]}"
def lds_wait_flag(off, cmp_op="s_cmp_lg_u32", val="0", sleep=2):
    l0, l1 = newlabel("lw"), newlabel("lwd")
    a(f"s_mov_b32 s75, {TMO_LDS}")
    a.label(l0)
    a(f"ds_read_b32 {VT}, {VZ} offset:{off}")
    a("s_waitcnt lgkmcnt(0)")
    a(f"v_readfirstlane_b32 s38, {VT}")
    a(f"{cmp_op} s38, {val}")
    a(f"s_cbranch_scc1 {l1}")
    timeout_check()
    a(f"s_sleep {sleep}")
    a(f"s_branch {l0}")
    a.label(l1)
def lds_set_flag(off):
    a("s_mov_b64 exec, 1")
    a(f"v_mov_b32 {VT}, 1")
    a(f"ds_write_b32 {VZ}, {VT} offset:{off}")
    a("s_mov_b64 exec, -1")
def rowreduce8(acc, o0, o1):
    for j in range(4): a(f"v_permlane32_swap_b32 v{acc[j]}, v{acc[j+4]}")
    for j in range(4): a(f"v_add_f32 v{acc[j]}, v{acc[j]}, v{acc[j+4]}")
    a(f"v_permlane16_swap_b32 v{acc[0]}, v{acc[2]}")
    a(f"v_permlane16_swap_b32 v{acc[1]}, v{acc[3]}")
    a(f"v_add_f32 v{o0}, v{acc[0]}, v{acc[2]}")
    a(f"v_add_f32 v{o1}, v{acc[1]}, v{acc[3]}")
def row_allreduce(op, reg):
    for n in (8, 4, 2, 1):
        a(f"{op}_dpp v{reg}, v{reg}, v{reg} row_ror:{n} {DPPF}")
def wave_reduce_to63(op, reg):
    row_allreduce(op, reg)
    a(f"{op}_dpp v{reg}, v{reg}, v{reg} row_bcast:15 row_mask:0xa bank_mask:0xf")
    a(f"{op}_dpp v{reg}, v{reg}, v{reg} row_bcast:31 row_mask:0xc bank_mask:0xf")
def rb16(dst, src):
    a(f"v_cvt_pk_bf16_f32 v{dst}, 0, v{src}")
def red16(regs):
    for n in (4, 8):
        for r in regs: a(f"v_add_f32_dpp v{r}, v{r}, v{r} row_ror:{n} {DPPF}")
    a(f"v_permlane32_swap_b32 v{regs[0]}, v{regs[2]}")
    a(f"v_permlane32_swap_b32 v{regs[1]}, v{regs[3]}")
    a(f"v_add_f32 v{regs[0]}, v{regs[0]}, v{regs[2]}")
    a(f"v_add_f32 v{regs[1]}, v{regs[1]}, v{regs[3]}")
    a(f"v_permlane16_swap_b32 v{regs[0]}, v{regs[1]}")
    a(f"v_add_f32 v{regs[0]}, v{regs[0]}, v{regs[1]}")
def tag_bad(grans, acc, t):
    first = True
    for g in grans:
        if first:
            a(f"v_xor_b32 v{acc}, s4, v{g+2}")
            a(f"v_xor_b32 v{t}, s5, v{g+3}")
            a(f"v_or_b32 v{acc}, v{acc}, v{t}")
            first = False
        else:
            a(f"v_xor_b32 v{t}, s4, v{g+2}")
            a(f"v_or_b32 v{acc}, v{acc}, v{t}")
            a(f"v_xor_b32 v{t}, s5, v{g+3}")
            a(f"v_or_b32 v{acc}, v{acc}, v{t}")
    a(f"v_cmp_ne_u32 vcc, 0, v{acc}")
def make_tags():
    a("s_add_u32 s4, s6, 1")
    a("s_mul_i32 s5, s4, 0x9e3779b1")
    a("s_xor_b32 s5, s5, 0x5bd1e995")
class Sched:
    def __init__(self): self.issued = []; self.landed = -1
    def issue(self, name): self.issued.append(name)
    def wait(self, name):
        idx = self.issued.index(name)
        if idx > self.landed:
            a(f"s_waitcnt vmcnt({len(self.issued) - 1 - idx})")
            self.landed = idx
def ws_srd():
    a("s_mov_b32 s60, s32")
    a("s_mov_b32 s61, s33")
    a(f"s_mov_b32 s62, {WS_SIZE}")
    a("s_mov_b32 s63, 0x20000")

if DBG: a("s_memrealtime s[90:91]")
a("s_load_dwordx16 s[8:23], s[0:1], 0")
a("s_load_dwordx8 s[24:31], s[0:1], 64")
a("s_load_dwordx2 s[32:33], s[0:1], 96")
a("s_cmp_ge_u32 s2, 256")
a("s_cbranch_scc1 L_end")
a(f"v_and_b32 {VL}, 63, v0")
a(f"v_lshrrev_b32 {VT}, 6, v0")
a(f"v_mov_b32 {VZ}, 0")
a(f"v_readfirstlane_b32 {S_WAVE}, {VT}")
a("v_lshlrev_b32 v124, 4, v0")
a(f"s_and_b32 {S_H}, s2, 7")
a(f"s_lshl_b32 {S_H}, {S_H}, 2")
a(f"s_lshr_b32 {S_S}, s2, 3")
a(f"s_and_b32 {S_S}, {S_S}, 3")
a(f"s_or_b32 {S_H}, {S_H}, {S_S}")
a(f"s_lshr_b32 {S_S}, s2, 5")
a(f"s_lshl_b32 {S_P}, {S_H}, 3")
a(f"s_or_b32 {S_P}, {S_P}, {S_S}")
a(f"s_cmp_lg_u32 {S_WAVE}, 8")
a("s_cbranch_scc1 L_noinit")
a(f"v_lshlrev_b32 {VT}, 2, {VL}")
a(f"ds_write_b32 {VT}, {VZ}")
a("s_waitcnt lgkmcnt(0)")
a.label("L_noinit")
a("s_barrier")
a(f"s_lshl_b32 s38, {S_P}, 18")
a("s_mov_b32 s42, 0x40000")
a("s_mov_b32 s43, 0x20000")
a("s_mov_b32 s46, 0x40000")
a("s_mov_b32 s47, 0x20000")
a(f"s_cmp_ge_u32 {S_WAVE}, 8")
a("s_waitcnt lgkmcnt(0)")
if DIAG: a("s_memrealtime s[80:81]")
a("s_cbranch_scc1 L_svc")
a("s_add_u32 s40, s10, s38")
a("s_addc_u32 s41, s11, 0")
a("s_add_u32 s44, s12, s38")
a("s_addc_u32 s45, s13, 0")
sch = Sched()
NA, NB = 0, 64
def slot(kind, i):
    if kind == "K":
        if i < 16: return 4 * i
        if i < 24: return 32 + 4 * (i - 16)
        return 64 + 4 * (i - 24)
    else:
        if i < 8: return 64 + 4 * i
        if i < 16: return 4 * (i - 8)
        if i < 24: return 4 * (i - 16)
        return 32 + 4 * (i - 24)
order = [("K", i) for i in range(16)] + [("V", i) for i in range(16)] + [("K", i) for i in range(16, 32)] + [("V", i) for i in range(16, 32)]
def issue(n):
    k, i = order[n]
    if n >= DEPTH: sch.wait("%s%d" % order[n - DEPTH])
    d = slot(k, i)
    srd = KSRD if k == "K" else VSRD
    if i == 0:
        a(f"buffer_load_dwordx4 v[{d}:{d+3}], v124, {srd}, 0 offen nt")
    else:
        a(f"s_mov_b32 s67, {i*8192}")
        a(f"buffer_load_dwordx4 v[{d}:{d+3}], v124, {srd}, s67 offen nt")
    sch.issue(f"{k}{i}")
def qk(i):
    sch.wait(f"K{i}")
    d = slot("K", i)
    for j in range(4):
        a(f"v_dot2c_f32_bf16 v{96 + i % 16}, v{d+j}, v{112+j}")
def pv(j):
    sch.wait(f"V{j}")
    d = slot("V", j)
    for t in range(4):
        a(f"v_dot2c_f32_bf16_dpp v{116+2*t}, v110, v{d+t} row_newbcast:{j % 16} {DPPF}")
        a(f"v_dot2c_f32_bf16_dpp v{117+2*t}, v111, v{d+t} row_newbcast:{j % 16} {DPPF}")
def butterfly():
    for i in range(8):
        a(f"v_add_f32_dpp v{96+i}, v{96+i}, v{96+i} row_ror:8 row_mask:0xf bank_mask:0x3")
        a(f"v_add_f32_dpp v{96+i}, v{104+i}, v{104+i} row_ror:8 row_mask:0xf bank_mask:0xc")
    for i in range(4):
        a(f"v_add_f32_dpp v{96+i}, v{96+i}, v{96+i} row_ror:12 row_mask:0xf bank_mask:0x5")
        a(f"v_add_f32_dpp v{96+i}, v{100+i}, v{100+i} row_ror:4 row_mask:0xf bank_mask:0xa")
    for i in range(4):
        a(f"v_add_f32_dpp v{96+i}, v{96+i}, v{96+i} quad_perm:[2,3,0,1] {DPPF}")
    a("v_cndmask_b32 v96, v96, v98, s[68:69]")
    a("v_cndmask_b32 v97, v97, v99, s[68:69]")
    a(f"v_add_f32_dpp v96, v96, v96 quad_perm:[1,0,3,2] {DPPF}")
    a(f"v_add_f32_dpp v97, v97, v97 quad_perm:[1,0,3,2] {DPPF}")
    a("v_cndmask_b32 v96, v96, v97, s[70:71]")
    a("v_mul_f32 v96, s78, v96")
    a("v_mov_b32 v97, v96")
    wave_reduce_to63("v_max_f32", 97)
C = {n: [] for n in range(64)}
def at(n, f): C[n].append(f)
def setup_scalars():
    ws_srd()
    a("s_mov_b32 s68, 0xcccccccc")
    a("s_mov_b32 s69, 0xcccccccc")
    a("s_mov_b32 s70, 0xaaaaaaaa")
    a("s_mov_b32 s71, 0xaaaaaaaa")
    a(f"s_mov_b32 s78, {f2u(SC):#x}")
    a(f"s_load_dword s6, s[32:33], {EPO}")
    a(f"v_and_b32 v121, 15, {VL}")
    a("v_lshlrev_b32 v121, 4, v121")
    for i in range(16): a(f"v_mov_b32 v{96+i}, 0")
at(DEPTH - 1, setup_scalars)
def qwait():
    lds_wait_flag(L_FQ)
    a(f"ds_read_b128 v[112:115], v121 offset:{L_Q}")
    stamp(1)
    a("s_waitcnt lgkmcnt(0)")
at(19, qwait)
for n in range(20, 24):
    for i in range(4 * (n - 20), 4 * (n - 20) + 4): at(n, lambda i=i: qk(i))
def softmax0():
    butterfly()
    a("v_readlane_b32 s72, v97, 63")
    a("v_subrev_f32 v96, s72, v96")
    a("v_exp_f32 v96, v96")
    a("v_cvt_pk_bf16_f32 v110, v96, 0")
    a("v_cvt_pk_bf16_f32 v111, 0, v96")
    a("v_mov_b32 v97, v111")
    wave_reduce_to63("v_add_f32", 97)
    a("v_readlane_b32 s73, v97, 63")
    for j in range(8): a(f"v_mov_b32 v{116+j}, 0")
    make_tags()
    stamp(2)
at(24, softmax0)
for j in range(8): at(25 + j // 2, lambda j=j: pv(j))
for j in range(8): at(max(29, 24 + j + DEPTH), lambda j=j: pv(8 + j))
nz = max(29, 24 + 7 + DEPTH)
def zeroS():
    for i in range(16): a(f"v_mov_b32 v{96+i}, 0")
at(nz, zeroS)
for j in range(16): at(max(nz, 32 + j + DEPTH), lambda j=j: qk(16 + j))
ns = 32 + 15 + DEPTH
def softmax1():
    butterfly()
    a("v_readlane_b32 s74, v97, 63")
    a("v_mov_b32 v98, s72")
    a("v_max_f32 v98, s74, v98")
    a("v_sub_f32 v96, v96, v98")
    a("v_sub_f32 v99, s72, v98")
    a("v_exp_f32 v96, v96")
    a("v_exp_f32 v99, v99")
    a("v_readfirstlane_b32 s72, v98")
    a("v_cvt_pk_bf16_f32 v110, v96, 0")
    a("v_cvt_pk_bf16_f32 v111, 0, v96")
    for j in range(8): a(f"v_mul_f32 v{116+j}, v99, v{116+j}")
    a("s_mov_b64 exec, 1")
    a(f"s_lshl_b32 s38, {S_WAVE}, 2")
    a("v_mov_b32 v97, s38")
    a(f"ds_write_b32 v97, v98 offset:{L_M}")
    a("v_mov_b32 v98, 1")
    a(f"ds_add_u32 {VZ}, v98 offset:{L_MC}")
    a("s_mov_b64 exec, -1")
    a("v_mov_b32 v97, v111")
    wave_reduce_to63("v_add_f32", 97)
    a("v_mul_f32 v99, s73, v99")
    a("v_readlane_b32 s73, v97, 63")
    a("v_add_f32 v102, s73, v99")
    stamp(3)
at(ns, softmax1)
done = 16
for n in range(ns + 1, 64):
    k = 0
    while done < 32 and k < 2 and (48 + (done - 16) + DEPTH) <= n:
        at(n, lambda j=done: pv(j)); done += 1; k += 1
for n in range(64):
    issue(n)
    for f in C[n]: f()
lds_wait_flag(L_MC, "s_cmp_ge_u32", "8", sleep=1)
a(f"v_and_b32 v99, 7, {VL}")
a("v_lshlrev_b32 v99, 2, v99")
a(f"ds_read_b32 v100, v99 offset:{L_M}")
a(f"v_lshrrev_b32 v98, 4, {VL}")
a(f"v_and_b32 v103, 15, {VL}")
a("v_lshlrev_b32 v103, 5, v103")
a("v_lshl_add_u32 v103, v98, 3, v103")
a(f"s_mul_i32 s38, {S_WAVE}, {OPS}")
a("v_add_u32 v104, s38, v103")
a("s_waitcnt lgkmcnt(0)")
a(f"v_max_f32_dpp v100, v100, v100 quad_perm:[1,0,3,2] {DPPF}")
a(f"v_max_f32_dpp v100, v100, v100 quad_perm:[2,3,0,1] {DPPF}")
a(f"v_max_f32_dpp v100, v100, v100 row_half_mirror {DPPF}")
a("v_sub_f32 v101, s72, v100")
a("v_exp_f32 v101, v101")
a(f"s_lshl_b32 s38, {S_WAVE}, 2")
a("v_mov_b32 v99, s38")
a("v_mul_f32 v102, v102, v101")
a("s_mov_b64 exec, 1")
a(f"ds_write_b32 v99, v102 offset:{L_L}")
a("s_mov_b64 exec, -1")
for j in range(done, 32): pv(j)
stamp(4)
rowreduce8(list(range(116, 124)), 116, 117)
a("v_mul_f32 v116, v101, v116")
a("v_mul_f32 v117, v101, v117")
a(f"ds_write_b64 v104, v[116:117] offset:{L_OP}")
a.label("L_barA")
a(f"v_and_b32 v106, 7, {VL}")
a(f"v_mul_u32_u24 v106, {OPS}, v106")
a(f"v_bfe_u32 v107, {VL}, 3, 2")
a("v_lshl_add_u32 v106, v107, 3, v106")
a(f"s_lshl_b32 s38, {S_WAVE}, 5")
a("v_add_u32 v106, s38, v106")
a(f"s_lshl_b32 s38, {S_WAVE}, 4")
a("v_lshl_add_u32 v107, v107, 2, s38")
a("s_mov_b32 s38, 0x01010101")
a("s_mov_b32 s39, 0")
a("s_waitcnt lgkmcnt(0)")
stamp(5)
a("s_barrier")
a(f"ds_read_b64 v[108:109], v106 offset:{L_OP}")
a("s_waitcnt lgkmcnt(0)")
for m in ("quad_perm:[1,0,3,2]", "quad_perm:[2,3,0,1]", "row_half_mirror"):
    a(f"v_add_f32_dpp v108, v108, v108 {m} {DPPF}")
    a(f"v_add_f32_dpp v109, v109, v109 {m} {DPPF}")
a("v_cvt_pk_bf16_f32 v108, v108, v109")
a("s_mov_b64 exec, s[38:39]")
a(f"ds_write_b32 v107, v108 offset:{L_OPK}")
a("s_mov_b64 exec, -1")
a("s_waitcnt lgkmcnt(0)")
a("s_barrier")
a(f"s_cmp_ge_u32 {S_WAVE}, 8")
a("s_cbranch_scc1 L_yphase")
a(f"s_cmp_lg_u32 {S_WAVE}, 0")
a("s_cbranch_scc1 L_pubdone")
a(f"v_and_b32 v99, 7, {VL}")
a("v_lshlrev_b32 v99, 2, v99")
a(f"ds_read_b32 v1, v99 offset:{L_L}")
a("v_mov_b32 v2, s4")
a("v_mov_b32 v3, s5")
a("v_mov_b32 v0, v100")
a("s_waitcnt lgkmcnt(0)")
for m in ("quad_perm:[1,0,3,2]", "quad_perm:[2,3,0,1]", "row_half_mirror"):
    a(f"v_add_f32_dpp v1, v1, v1 {m} {DPPF}")
a(f"s_lshl_b32 s38, {S_P}, 4")
a(f"s_add_u32 s38, s38, {MLB}")
a("s_mov_b64 exec, 1")
a(f"buffer_store_dwordx4 v[0:3], {VZ}, {WSRD}, s38 offen sc1")
a("s_mov_b64 exec, -1")
a("s_branch L_pubdone")
a.label("L_yphase")
a(f"ds_read_b128 v[72:75], v105 offset:{L_OPK}")
a(f"ds_read_b128 v[76:79], v105 offset:{L_OPK+16}")
a("s_waitcnt lgkmcnt(0)")
PMAP = {}
spare = 64
for k in range(8):
    A_, B_ = 8 * k, 8 * k + 4
    PMAP[k] = (spare, B_)
    spare = A_
for k in range(8):
    lo, hi = PMAP[k]
    for j in range(4):
        a(f"v_dot2c_f32_bf16 v{80+2*j}, v{72+k}, v{lo+j}")
        a(f"v_dot2c_f32_bf16 v{81+2*j}, v{72+k}, v{hi+j}")
rowreduce8(list(range(80, 88)), 88, 89)
a(f"v_add_f32_dpp v88, v88, v88 row_ror:8 {DPPF}")
a(f"v_add_f32_dpp v89, v89, v89 row_ror:8 {DPPF}")
a(f"buffer_store_dwordx4 v[88:91], v104, {WSRD}, s79 offen sc1")
stamp(6)
a.label("L_pubdone")
a("s_cmp_ge_u32 s2, 0" if NORED else "s_cmp_ge_u32 s2, 32")
a("s_cbranch_scc1 L_fin")
a(f"s_lshl_b32 s38, {S_WAVE}, 6")
a(f"v_add_u32 v99, s38, {VL}")
a("v_lshlrev_b32 v98, 5, v99")
a("v_lshrrev_b32 v97, 2, v99")
a("v_lshlrev_b32 v97, 4, v97")
a("s_lshl_b32 s38, s2, 14")
a(f"s_add_u32 s38, s38, {YBB}")
a("s_add_u32 s52, s32, s38")
a("s_addc_u32 s53, s33, 0")
a(f"s_mov_b32 s54, {86*128}")
a("s_mov_b32 s55, 0x20000")
a("s_lshl_b32 s38, s2, 15")
a(f"s_add_u32 s38, s38, {YMB}")
a(f"s_mov_b32 s39, {MLB}")
a(f"ds_read_b64 v[24:25], {VZ} offset:{L_G}")
a("s_mov_b32 s79, 0x158")
a("v_cmp_gt_u32 s[72:73], s79, v99")
a(f"s_mov_b32 s75, {TMO_MEM}")
a.label("L_mlpoll")
a(f"buffer_load_dwordx4 v[8:11], v97, {WSRD}, s39 offen sc1")
a("s_waitcnt vmcnt(0)")
tag_bad([8], 20, 21)
a("s_cbranch_vccz L_mlok")
timeout_check()
a("s_sleep 2")
a("s_branch L_mlpoll")
a.label("L_mlok")
a.label("L_rpoll")
a(f"buffer_load_dwordx4 v[0:3], v98, {WSRD}, s38 offen sc1")
a(f"buffer_load_dwordx4 v[4:7], v98, {WSRD}, s38 offen offset:16 sc1")
a(f"buffer_load_dwordx4 v[12:15], v98, {TSRD}, 0 offen sc1")
a(f"buffer_load_dwordx4 v[16:19], v98, {TSRD}, 0 offen offset:16 sc1")
a("v_mov_b32 v26, v8")
a(f"v_max_f32_dpp v26, v26, v26 row_ror:4 {DPPF}")
a(f"v_max_f32_dpp v26, v26, v26 row_ror:8 {DPPF}")
a("v_mov_b32 v27, v26")
a("v_permlane16_swap_b32 v26, v27")
a("v_max_f32 v26, v26, v27")
a("v_sub_f32 v26, v8, v26")
a("v_exp_f32 v26, v26")
a("v_mul_f32 v28, v26, v9")
a(f"v_add_f32_dpp v28, v28, v28 row_ror:4 {DPPF}")
a(f"v_add_f32_dpp v28, v28, v28 row_ror:8 {DPPF}")
a("v_mov_b32 v27, v28")
a("v_permlane16_swap_b32 v28, v27")
a("v_add_f32 v28, v28, v27")
a("v_rcp_f32 v28, v28")
a("s_waitcnt lgkmcnt(0)")
a("v_mul_f32 v26, v26, v24")
a("v_mul_f32 v26, v26, v28")
a("s_waitcnt vmcnt(0)")
tag_bad([12, 16], 20, 21)
a("s_and_b64 s[76:77], vcc, s[72:73]")
tag_bad([0, 4], 20, 21)
a("s_or_b64 s[76:77], s[76:77], vcc")
a("s_cmp_eq_u64 s[76:77], 0")
a("s_cbranch_scc1 L_rok")
timeout_check()
a("s_branch L_rpoll")
a.label("L_rok")
stamp(7)
a("v_mul_f32 v12, v25, v12")
a("v_mul_f32 v13, v25, v13")
a("v_mul_f32 v16, v25, v16")
a("v_mul_f32 v17, v25, v17")
a("v_fma_f32 v2, v26, v4, v16")
a("v_fma_f32 v3, v26, v5, v17")
a("v_fma_f32 v0, v26, v0, v12")
a("v_fma_f32 v1, v26, v1, v13")
red16([0, 1, 2, 3])
a(f"v_and_b32 v8, 3, {VL}")
a("v_lshlrev_b32 v8, 4, v8")
a(f"v_lshrrev_b32 v9, 4, {VL}")
a("v_lshl_add_u32 v8, v9, 2, v8")
a(f"s_lshl_b32 s38, {S_WAVE}, 6")
a("v_add_u32 v9, s38, v8")
a("s_mov_b32 s38, 0x000f000f")
a("s_mov_b32 s39, 0x000f000f")
a("s_mov_b64 exec, s[38:39]")
a(f"ds_write_b32 v9, v0 offset:{L_RED}")
a("s_mov_b64 exec, -1")
a("s_waitcnt lgkmcnt(0)")
a("s_barrier")
a(f"s_cmp_lg_u32 {S_WAVE}, 0")
a("s_cbranch_scc1 L_fin")
a(f"v_lshlrev_b32 v9, 4, {VL}")
a(f"ds_read_b128 v[0:3], v9 offset:{L_RED}")
a("v_lshrrev_b32 v8, 1, v8")
a("s_lshl_b32 s79, s2, 5")
a("s_mov_b32 s52, s28")
a("s_mov_b32 s53, s29")
a("s_mov_b32 s54, 1024")
a("s_mov_b32 s55, 0x20000")
a("v_mov_b32 v4, s4")
a("s_waitcnt lgkmcnt(0)")
red16([0, 1, 2, 3])
a("v_cvt_pk_bf16_f32 v0, v0, 0")
a("s_mov_b64 exec, s[38:39]")
a(f"buffer_store_short v0, v8, {TSRD}, s79 offen")
a("s_cmp_lg_u32 s2, 0")
a("s_cbranch_scc1 L_fin")
a("s_mov_b64 exec, 1")
a(f"s_mov_b32 s38, {EPO}")
a(f"buffer_store_dword v4, {VZ}, {WSRD}, s38 offen sc1")
a.label("L_fin")
a("s_mov_b64 exec, -1")
if DIAG:
    a("s_memrealtime s[96:97]")
    a("s_waitcnt lgkmcnt(0)")
    for k in range(11): a(f"v_mov_b32 v{k}, s{80+2*k}")
    a("s_lshl_b32 s38, s2, 4")
    a(f"s_add_u32 s38, s38, {S_WAVE}")
    a("s_lshl_b32 s38, s38, 6")
    a(f"s_add_u32 s38, s38, {DIAGO}")
    a("s_mov_b64 exec, 1")
    a(f"buffer_store_dwordx4 v[0:3], {VZ}, {WSRD}, s38 offen")
    a(f"buffer_store_dwordx4 v[4:7], {VZ}, {WSRD}, s38 offen offset:16")
    a(f"buffer_store_dwordx4 v[8:11], {VZ}, {WSRD}, s38 offen offset:32")
if DBG:
    a("s_cmp_ge_u32 s2, 8")
    a("s_cbranch_scc1 L_end")
    a(f"s_cmp_lg_u32 {S_WAVE}, 0")
    a("s_cbranch_scc1 L_end")
    a("s_memrealtime s[92:93]")
    a("s_waitcnt lgkmcnt(0)")
    a("v_mov_b32 v0, s90")
    a("v_mov_b32 v1, s92")
    a("s_mov_b32 s52, s30")
    a("s_mov_b32 s53, s31")
    a("s_mov_b32 s54, 256")
    a("s_mov_b32 s55, 0x20000")
    a("s_lshl_b32 s38, s2, 3")
    a("s_mov_b64 exec, 1")
    a(f"buffer_store_dwordx2 v[0:1], {VZ}, {TSRD}, s38 offen")
a.label("L_end")
a("s_endpgm")

a.label("L_svc")
ws_srd()
a(f"s_load_dword s6, s[32:33], {EPO}")
a(f"s_cmp_eq_u32 {S_WAVE}, 9")
a("s_cbranch_scc1 L_b1")
a(f"s_cmp_eq_u32 {S_WAVE}, 10")
a("s_cbranch_scc1 L_b2")
a(f"s_cmp_eq_u32 {S_WAVE}, 11")
a("s_cbranch_scc1 L_gate")
a(f"s_cmp_lg_u32 {S_WAVE}, 8")
a("s_cbranch_scc1 L_wo")
a(f"s_lshl_b32 s38, {S_S}, 19")
a(f"s_lshl_b32 s39, {S_H}, 8")
a("s_add_u32 s38, s38, s39")
a("s_add_u32 s52, s14, s38")
a("s_addc_u32 s53, s15, 0")
a("s_sub_u32 s54, 0x400000, s38")
a("s_mov_b32 s55, 0x20000")
a(f"v_lshrrev_b32 v122, 4, {VL}")
a(f"v_and_b32 v121, 15, {VL}")
a("v_lshlrev_b32 v120, 17, v122")
a("v_lshl_add_u32 v120, v121, 4, v120")
a("v_lshlrev_b32 v119, 5, v122")
a(f"s_lshl_b32 s38, {S_S}, 7")
a("v_add_u32 v119, s38, v119")
a("global_load_dwordx4 v[64:67], v119, s[8:9]")
a("global_load_dwordx4 v[68:71], v119, s[8:9] offset:16")
for i in range(16):
    a(f"buffer_load_dwordx4 v[{4*i}:{4*i+3}], v120, {TSRD}, 0 offen nt")
    if i < 15: a("v_add_u32 v120, 0x2000, v120")
for j in range(8): a(f"v_mov_b32 v{104+j}, 0")
a("s_waitcnt vmcnt(16)")
for k in range(8):
    a(f"v_and_b32 v{72+4*k}, 0xffff, v{64+k}")
    a(f"v_lshlrev_b32 v{73+4*k}, 16, v{64+k}")
    a(f"v_lshrrev_b32 v{74+4*k}, 16, v{64+k}")
    a(f"v_and_b32 v{75+4*k}, 0xffff0000, v{64+k}")
for i in range(16):
    a(f"s_waitcnt vmcnt({15 - i})")
    for j in range(4):
        a(f"v_dot2c_f32_bf16 v{104+2*j}, v{72+2*i}, v{4*i+j}")
        a(f"v_dot2c_f32_bf16 v{105+2*j}, v{73+2*i}, v{4*i+j}")
rowreduce8(list(range(104, 112)), 104, 105)
a("s_waitcnt lgkmcnt(0)")
make_tags()
a("v_mov_b32 v106, s4")
a("v_mov_b32 v107, s5")
a("v_lshlrev_b32 v119, 6, v121")
a("v_lshl_add_u32 v119, v122, 4, v119")
a(f"s_lshl_b32 s79, {S_P}, 10")
a(f"buffer_store_dwordx4 v[104:107], v119, {WSRD}, s79 offen sc1")
stamp(9)
a(f"v_lshlrev_b32 v119, 4, {VL}")
a(f"s_lshl_b32 s79, {S_H}, 13")
a("s_add_u32 s38, s79, 4096")
a(f"s_mov_b32 s75, {TMO_MEM}")
a.label("L_qpoll")
for i in range(8):
    so = "s79" if i < 4 else "s38"
    a(f"buffer_load_dwordx4 v[{4*i}:{4*i+3}], v119, {WSRD}, {so} offen offset:{1024*(i%4)} sc1")
a("s_waitcnt vmcnt(0)")
tag_bad([4*i for i in range(8)], 32, 33)
a("s_cbranch_vccz L_qok")
timeout_check()
a("s_branch L_qpoll")
a.label("L_qok")
for j in range(2):
    a(f"v_add_f32 v{j}, v{j}, v{4+j}")
    a(f"v_add_f32 v{8+j}, v{8+j}, v{12+j}")
    a(f"v_add_f32 v{16+j}, v{16+j}, v{20+j}")
    a(f"v_add_f32 v{24+j}, v{24+j}, v{28+j}")
for j in range(2):
    a(f"v_add_f32 v{j}, v{j}, v{8+j}")
    a(f"v_add_f32 v{16+j}, v{16+j}, v{24+j}")
for j in range(2): a(f"v_add_f32 v{j}, v{j}, v{16+j}")
a("v_cvt_pk_bf16_f32 v0, v0, v1")
a(f"v_lshlrev_b32 v119, 2, {VL}")
a(f"ds_write_b32 v119, v0 offset:{L_Q}")
a("s_waitcnt lgkmcnt(0)")
lds_set_flag(L_FQ)
stamp(10)
a("s_branch L_wo2")

a.label("L_b1")
a("s_cmp_ge_u32 s2, 172")
a("s_cbranch_scc1 L_wo")
a("s_and_b32 s38, s2, 3")
a(f"s_mul_i32 s39, s38, {64*5504}")
a("s_lshr_b32 s79, s2, 2")
a("s_lshl_b32 s74, s79, 7")
a("s_add_u32 s39, s39, s74")
a("s_add_u32 s52, s20, s39")
a("s_addc_u32 s53, s21, 0")
a(f"s_sub_u32 s54, {512*2752}, s39")
a("s_mov_b32 s55, 0x20000")
a("s_add_u32 s48, s22, s39")
a("s_addc_u32 s49, s23, 0")
a("s_mov_b32 s50, s54")
a("s_mov_b32 s51, 0x20000")
a(f"v_lshrrev_b32 v122, 3, {VL}")
a(f"v_and_b32 v121, 7, {VL}")
a(f"v_mul_u32_u24 v120, {8*5504}, v122")
a("v_lshl_add_u32 v120, v121, 4, v120")
a("v_lshlrev_b32 v119, 5, v122")
a("s_lshl_b32 s38, s38, 8")
a("v_add_u32 v119, s38, v119")
a("global_load_dwordx4 v[64:67], v119, s[8:9]")
a("global_load_dwordx4 v[68:71], v119, s[8:9] offset:16")
a("s_lshl_b32 s74, s79, 6")
a("v_lshl_add_u32 v118, v121, 3, s74")
a("s_movk_i32 s74, 1375")
a("v_cmp_lt_u32 vcc, s74, v118")
a("v_cndmask_b32 v118, 0, 16, vcc")
nl = 0
for i in range(8):
    for srd, base in ((TSRD, 0), (WOSRD, 32)):
        if nl >= BD: a(f"s_waitcnt vmcnt({BD-1})")
        a(f"buffer_load_dwordx4 v[{base+4*i}:{base+4*i+3}], v120, {srd}, 0 offen nt"); nl += 1
    if i < 7: a("v_add_u32 v120, 5504, v120")
for j in range(16): a(f"v_mov_b32 v{96+j}, 0")
for i in range(8):
    a(f"v_lshrrev_b32 v117, v118, v{64+i}")
    a(f"v_and_b32 v{72+2*i}, 0xffff, v117")
    a(f"v_lshlrev_b32 v{73+2*i}, 16, v117")
a("s_waitcnt vmcnt(0)")
for i in range(8):
    for j in range(4):
        a(f"v_dot2c_f32_bf16 v{96+2*j}, v{72+2*i}, v{4*i+j}")
        a(f"v_dot2c_f32_bf16 v{97+2*j}, v{73+2*i}, v{4*i+j}")
        a(f"v_dot2c_f32_bf16 v{104+2*j}, v{72+2*i}, v{32+4*i+j}")
        a(f"v_dot2c_f32_bf16 v{105+2*j}, v{73+2*i}, v{32+4*i+j}")
for b in (96, 104):
    for j in range(4): a(f"v_permlane32_swap_b32 v{b+j}, v{b+4+j}")
for b in (96, 104):
    for j in range(4): a(f"v_add_f32 v{b+j}, v{b+j}, v{b+4+j}")
for b in (96, 104):
    for j in range(2): a(f"v_permlane16_swap_b32 v{b+j}, v{b+2+j}")
for b in (96, 104):
    for j in range(2): a(f"v_add_f32 v{b+j}, v{b+j}, v{b+2+j}")
for b in (96, 104):
    a(f"v_add_f32_dpp v{b}, v{b}, v{b} row_ror:8 row_mask:0xf bank_mask:0x3")
    a(f"v_add_f32_dpp v{b}, v{b+1}, v{b+1} row_ror:8 row_mask:0xf bank_mask:0xc")
a("s_waitcnt lgkmcnt(0)")
make_tags()
a("v_mov_b32 v97, v104")
a("v_mov_b32 v98, s4")
a("v_mov_b32 v99, s5")
a(f"v_bfe_u32 v100, {VL}, 5, 1")
a("v_lshlrev_b32 v100, 2, v100")
a(f"v_bfe_u32 v101, {VL}, 4, 1")
a("v_lshl_add_u32 v100, v101, 1, v100")
a(f"v_bfe_u32 v101, {VL}, 3, 1")
a("v_add_u32 v100, v100, v101")
a("v_lshl_add_u32 v100, v121, 3, v100")
a("v_lshlrev_b32 v100, 4, v100")
a("s_lshl_b32 s79, s2, 10")
a(f"s_add_u32 s79, s79, {BMB}")
a(f"buffer_store_dwordx4 v[96:99], v100, {WSRD}, s79 offen sc1")
stamp(9)
a("s_branch L_wo")

a.label("L_b2")
a("s_cmp_lt_u32 s2, 170")
a("s_cbranch_scc1 L_wo")
a("s_sub_u32 s79, s2, 170")
a("s_lshl_b32 s38, s79, 14")
a("s_add_u32 s52, s24, s38")
a("s_addc_u32 s53, s25, 0")
a("s_mov_b32 s54, 16384")
a("s_mov_b32 s55, 0x20000")
a(f"v_lshlrev_b32 v102, 4, {VL}")
for i in range(16):
    if i >= BD: a(f"s_waitcnt vmcnt({BD-1})")
    a(f"s_mov_b32 s67, {i*1024}")
    a(f"buffer_load_dwordx4 v[{4*i}:{4*i+3}], v102, {TSRD}, s67 offen nt")
a(f"v_and_b32 v114, 15, {VL}")
a("s_lshl_b32 s38, s79, 4")
a("v_add_u32 v114, s38, v114")
a("v_add_u32 v115, 1376, v114")
a(f"v_lshrrev_b32 v103, 4, {VL}")
a("v_lshlrev_b32 v103, 10, v103")
for r, d in ((114, 116), (115, 117)):
    a(f"v_lshrrev_b32 v{d}, 6, v{r}")
    a(f"v_lshlrev_b32 v{d}, 12, v{d}")
    a(f"v_and_b32 v{r}, 63, v{r}")
    a(f"v_lshl_add_u32 v{d}, v{r}, 4, v{d}")
    a(f"v_add_u32 v{d}, v{d}, v103")
a(f"s_mov_b32 s38, {BMB}")
a("s_waitcnt lgkmcnt(0)")
make_tags()
a(f"s_mov_b32 s75, {TMO_MEM}")
a.label("L_bpoll")
a(f"buffer_load_dwordx4 v[104:107], v116, {WSRD}, s38 offen sc1")
a(f"buffer_load_dwordx4 v[108:111], v117, {WSRD}, s38 offen sc1")
a("s_waitcnt vmcnt(0)")
tag_bad([104, 108], 100, 101)
a("s_cbranch_vccz L_bok")
timeout_check()
a("s_sleep 8")
a("s_branch L_bpoll")
a.label("L_bok")
a("v_add_f32 v112, v104, v108")
a("v_add_f32 v113, v105, v109")
for r in (112, 113):
    a(f"v_mov_b32 v100, v{r}")
    a(f"v_permlane16_swap_b32 v{r}, v100")
    a(f"v_add_f32 v{r}, v{r}, v100")
    a(f"v_mov_b32 v100, v{r}")
    a(f"v_permlane32_swap_b32 v{r}, v100")
    a(f"v_add_f32 v{r}, v{r}, v100")
rb16(112, 112)
rb16(113, 113)
a("v_mul_f32 v114, v112, v113")
a("v_cvt_pk_bf16_f32 v112, v114, 0")
a("v_cvt_pk_bf16_f32 v113, 0, v114")
for k in range(4):
    a(f"v_mov_b32 v{96+4*k}, 0")
    a(f"v_mov_b32 v{97+4*k}, 0")
    a(f"v_mov_b32 v{98+4*k}, s4")
    a(f"v_mov_b32 v{99+4*k}, s5")
for i in range(16):
    for j in range(4):
        a(f"v_dot2c_f32_bf16_dpp v{96+4*j}, v112, v{4*i+j} row_newbcast:{i} {DPPF}")
        a(f"v_dot2c_f32_bf16_dpp v{97+4*j}, v113, v{4*i+j} row_newbcast:{i} {DPPF}")
a(f"v_lshrrev_b32 v114, 1, {VL}")
a("v_lshlrev_b32 v114, 14, v114")
a(f"v_and_b32 v115, 1, {VL}")
a("v_lshl_add_u32 v114, v115, 6, v114")
a("s_lshl_b32 s38, s79, 7")
a(f"s_add_u32 s38, s38, {YBB}")
for k in range(4):
    a(f"buffer_store_dwordx4 v[{96+4*k}:{99+4*k}], v114, {WSRD}, s38 offen offset:{16*k} sc1")
stamp(9)
a("s_branch L_wo")

a.label("L_gate")
a("s_cmp_ge_u32 s2, 32")
a("s_cbranch_scc1 L_wo")
a(f"v_lshlrev_b32 v102, 4, {VL}")
a("global_load_dwordx4 v[8:11], v102, s[8:9]")
a("global_load_dwordx4 v[12:15], v102, s[26:27]")
a("v_mov_b32 v16, 0")
a("s_mov_b32 s38, 0x3f803f80")
a("s_waitcnt vmcnt(0)")
for j in range(4):
    a(f"v_lshlrev_b32 v17, 16, v{8+j}")
    a(f"v_lshlrev_b32 v18, 16, v{12+j}")
    a(f"v_and_b32 v19, 0xffff0000, v{8+j}")
    a(f"v_and_b32 v20, 0xffff0000, v{12+j}")
    a("v_mul_f32 v17, v17, v18")
    a("v_mul_f32 v19, v19, v20")
    a("v_cvt_pk_bf16_f32 v17, v17, v19")
    a("v_dot2c_f32_bf16 v16, s38, v17")
wave_reduce_to63("v_add_f32", 16)
a("v_readlane_b32 s38, v16, 63")
a("v_mov_b32 v16, s38")
rb16(16, 16)
a(f"v_mul_f32 v16, {f2u(-1.4426950408889634):#x}, v16")
a("v_exp_f32 v16, v16")
a("v_add_f32 v16, 1.0, v16")
a("v_rcp_f32 v16, v16")
rb16(16, 16)
a("v_sub_f32 v17, 1.0, v16")
rb16(17, 17)
a("s_mov_b64 exec, 1")
a(f"ds_write_b64 {VZ}, v[16:17] offset:{L_G}")
a("s_mov_b64 exec, -1")
a.label("L_wo")
lds_wait_flag(L_FQ, sleep=8)
a.label("L_wo2")
a(f"s_lshl_b32 s38, {S_H}, 17")
a("s_add_u32 s48, s16, s38")
a("s_addc_u32 s49, s17, 0")
a("s_mov_b32 s50, 0x20000")
a("s_mov_b32 s51, 0x20000")
a("s_mov_b32 s76, 0x05040100")
a("s_mov_b32 s77, 0x07060302")
a(f"v_lshrrev_b32 v122, 3, {VL}")
a(f"v_and_b32 v121, 7, {VL}")
a("v_lshlrev_b32 v120, 14, v122")
a("v_lshl_add_u32 v120, v121, 4, v120")
a(f"s_sub_u32 s74, {S_WAVE}, 8")
a("s_lshl_b32 s38, s74, 7")
a("v_add_u32 v120, s38, v120")
sw = Sched()
for i in range(16):
    if i >= WOD: sw.wait(f"W{i-WOD}")
    a(f"s_mov_b32 s67, {i*1024}")
    a(f"buffer_load_dwordx4 v[{4*i}:{4*i+3}], v120, {WOSRD}, s67 offen nt")
    sw.issue(f"W{i}")
a("v_lshlrev_b32 v105, 5, v122")
a(f"v_bfe_u32 v100, {VL}, 5, 1")
a("v_lshlrev_b32 v100, 1, v100")
a(f"v_bfe_u32 v101, {VL}, 4, 1")
a("v_add_u32 v100, v100, v101")
a("v_lshl_add_u32 v100, v121, 2, v100")
a("v_lshrrev_b32 v101, 3, v100")
a("v_lshlrev_b32 v101, 15, v101")
a("v_and_b32 v100, 7, v100")
a("v_lshl_add_u32 v104, v100, 4, v101")
a(f"v_bfe_u32 v101, {VL}, 3, 1")
a("v_lshl_or_b32 v104, v101, 31, v104")
a("s_lshl_b32 s38, s74, 17")
a(f"s_lshl_b32 s79, {S_P}, 7")
a("s_add_u32 s79, s79, s38")
a(f"s_add_u32 s79, s79, {YMB}")
a("s_waitcnt lgkmcnt(0)")
make_tags()
a("v_mov_b32 v90, s4")
a("v_mov_b32 v91, s5")
for k in range(8):
    sw.wait(f"W{2*k+1}")
    lo, hi = PMAP[k]
    A_, B_ = 8 * k, 8 * k + 4
    for j in range(4): a(f"v_perm_b32 v{lo+j}, v{B_+j}, v{A_+j}, s76")
    for j in range(4): a(f"v_perm_b32 v{hi+j}, v{B_+j}, v{A_+j}, s77")
for j in range(80, 88): a(f"v_mov_b32 v{j}, 0")
stamp(4)
a("s_branch L_barA")

src = header(256, 1024, LDS_SIZE) + kstart() + a.text() + kdesc(vgpr=128, sgpr=102 if (DIAG or DBG) else 80)
open(OUT, "w").write(src)
print("lines", len(a.lines), "lds", LDS_SIZE)
```

```python
import sys, struct
from emit import Asm
from hdr import *

DIAG = "-diag" in sys.argv
OUT = sys.argv[1]
def opt(name, default):
    for x in sys.argv:
        if x.startswith(f"-{name}="): return int(x.split("=")[1])
    return default
DEPTH = opt("depth", 3)
WOD = opt("wod", 2)
DEPTH2 = opt("depth2", DEPTH)
N2 = opt("n2", 48)
BD = opt("bd", 4)
NORED = "-nored" in sys.argv
DBG = "-dbg" in sys.argv
NOCOMP = "-nocomp" in sys.argv
NOQW = "-noqw" in sys.argv
NOSVC = "-nosvc" in sys.argv
NOQP = "-noqp" in sys.argv
NOB1 = "-nob1" in sys.argv
NOB2 = "-nob2" in sys.argv
NOWO = "-nowo" in sys.argv
NOWQ = "-nowq" in sys.argv
QACK = "-noqack" not in sys.argv
QW = opt("qw", 23)
MAP = opt("map", 0)
ROT = opt("rot", 0)
def f2u(x): return struct.unpack("<I", struct.pack("<f", x))[0]

QMB, BMB, QM2, MLB, EPO, YBB, YMB, DIAGO = 0x0, 0x40000, 0x6C000, 0x70000, 0x7F000, 0x80000, 0x100000, 0x200000
WS_SIZE = 0x300000
L_FQ, L_MC = 8, 12
L_M, L_L, L_Q, L_OPK, L_G = 0x40, 0x80, 0x100, 0x200, 0x340
L_OP, OPS = 0x400, 544
L_RED = 0x400 + 8 * 544
L_YT = L_RED + 1024
LDS_SIZE = L_YT + 2048
SC = (128 ** -0.5) * 1.4426950408889634
TMO_LDS = 1 << 20
TMO_MEM = 1 << 16

a = Asm()
DPPF = "row_mask:0xf bank_mask:0xf"
S_WAVE, S_H, S_S, S_P = "s34", "s35", "s36", "s37"
KSRD, VSRD, WOSRD, TSRD, WSRD = "s[40:43]", "s[44:47]", "s[48:51]", "s[52:55]", "s[60:63]"
VL, VZ, VT = "v125", "v127", "v126"

def stamp(idx):
    if DIAG: a(f"s_memrealtime s[{80+2*idx}:{81+2*idx}]")
def timeout_check(lbl_abort="L_end"):
    a("s_sub_u32 s75, s75, 1")
    a("s_cmp_eq_u32 s75, 0")
    a(f"s_cbranch_scc1 {lbl_abort}")
_lc = [0]
def newlabel(p):
    _lc[0] += 1
    return f"L_{p}{_lc[0]}"
def lds_wait_flag(off, cmp_op="s_cmp_lg_u32", val="0", sleep=2):
    l0, l1 = newlabel("lw"), newlabel("lwd")
    a(f"s_mov_b32 s75, {TMO_LDS}")
    a.label(l0)
    a(f"ds_read_b32 {VT}, {VZ} offset:{off}")
    a("s_waitcnt lgkmcnt(0)")
    a(f"v_readfirstlane_b32 s38, {VT}")
    a(f"{cmp_op} s38, {val}")
    a(f"s_cbranch_scc1 {l1}")
    timeout_check()
    a(f"s_sleep {sleep}")
    a(f"s_branch {l0}")
    a.label(l1)
def lds_set_flag(off):
    a("s_mov_b64 exec, 1")
    a(f"v_mov_b32 {VT}, 1")
    a(f"ds_write_b32 {VZ}, {VT} offset:{off}")
    a("s_mov_b64 exec, -1")
def rowreduce8(acc, o0, o1):
    for j in range(4): a(f"v_permlane32_swap_b32 v{acc[j]}, v{acc[j+4]}")
    for j in range(4): a(f"v_add_f32 v{acc[j]}, v{acc[j]}, v{acc[j+4]}")
    a(f"v_permlane16_swap_b32 v{acc[0]}, v{acc[2]}")
    a(f"v_permlane16_swap_b32 v{acc[1]}, v{acc[3]}")
    a(f"v_add_f32 v{o0}, v{acc[0]}, v{acc[2]}")
    a(f"v_add_f32 v{o1}, v{acc[1]}, v{acc[3]}")
def row_allreduce(op, reg):
    for n in (8, 4, 2, 1):
        a(f"{op}_dpp v{reg}, v{reg}, v{reg} row_ror:{n} {DPPF}")
def wave_reduce_to63(op, reg):
    row_allreduce(op, reg)
    a(f"{op}_dpp v{reg}, v{reg}, v{reg} row_bcast:15 row_mask:0xa bank_mask:0xf")
    a(f"{op}_dpp v{reg}, v{reg}, v{reg} row_bcast:31 row_mask:0xc bank_mask:0xf")
def rb16(dst, src):
    a(f"v_cvt_pk_bf16_f32 v{dst}, 0, v{src}")
def red16(regs):
    for n in (4, 8):
        for r in regs: a(f"v_add_f32_dpp v{r}, v{r}, v{r} row_ror:{n} {DPPF}")
    a(f"v_permlane32_swap_b32 v{regs[0]}, v{regs[2]}")
    a(f"v_permlane32_swap_b32 v{regs[1]}, v{regs[3]}")
    a(f"v_add_f32 v{regs[0]}, v{regs[0]}, v{regs[2]}")
    a(f"v_add_f32 v{regs[1]}, v{regs[1]}, v{regs[3]}")
    a(f"v_permlane16_swap_b32 v{regs[0]}, v{regs[1]}")
    a(f"v_add_f32 v{regs[0]}, v{regs[0]}, v{regs[1]}")
def tag_bad(grans, acc, t):
    first = True
    for g in grans:
        if first:
            a(f"v_xor_b32 v{acc}, s4, v{g+2}")
            a(f"v_xor_b32 v{t}, s5, v{g+3}")
            a(f"v_or_b32 v{acc}, v{acc}, v{t}")
            first = False
        else:
            a(f"v_xor_b32 v{t}, s4, v{g+2}")
            a(f"v_or_b32 v{acc}, v{acc}, v{t}")
            a(f"v_xor_b32 v{t}, s5, v{g+3}")
            a(f"v_or_b32 v{acc}, v{acc}, v{t}")
    a(f"v_cmp_ne_u32 vcc, 0, v{acc}")
def make_tags():
    a("s_add_u32 s4, s6, 1")
    a("s_mul_i32 s5, s4, 0x9e3779b1")
    a("s_xor_b32 s5, s5, 0x5bd1e995")
class Sched:
    def __init__(self): self.issued = []; self.landed = -1
    def issue(self, name): self.issued.append(name)
    def wait(self, name):
        idx = self.issued.index(name)
        if idx > self.landed:
            a(f"s_waitcnt vmcnt({len(self.issued) - 1 - idx})")
            self.landed = idx
def ws_srd():
    a("s_mov_b32 s60, s32")
    a("s_mov_b32 s61, s33")
    a(f"s_mov_b32 s62, {WS_SIZE}")
    a("s_mov_b32 s63, 0x20000")

if DBG: a("s_memrealtime s[90:91]")
a("s_load_dwordx16 s[8:23], s[0:1], 0")
a("s_load_dwordx8 s[24:31], s[0:1], 64")
a("s_load_dwordx2 s[32:33], s[0:1], 96")
a("s_cmp_ge_u32 s2, 256")
a("s_cbranch_scc1 L_end")
a(f"v_and_b32 {VL}, 63, v0")
a(f"v_lshrrev_b32 {VT}, 6, v0")
a(f"v_mov_b32 {VZ}, 0")
a(f"v_readfirstlane_b32 {S_WAVE}, {VT}")
a("v_lshlrev_b32 v124, 4, v0")
if MAP in (0, 1, 3):
    a(f"s_and_b32 {S_H}, s2, 7")
    if MAP == 1: a(f"s_xor_b32 {S_H}, {S_H}, 4")
    if MAP == 3: a(f"s_xor_b32 {S_H}, {S_H}, 2")
    a(f"s_lshl_b32 {S_H}, {S_H}, 2")
    a(f"s_lshr_b32 {S_S}, s2, 3")
    a(f"s_and_b32 {S_S}, {S_S}, 3")
    a(f"s_or_b32 {S_H}, {S_H}, {S_S}")
    a(f"s_lshr_b32 {S_S}, s2, 5")
elif MAP == 2:
    a(f"s_lshr_b32 {S_H}, s2, 3")
    a(f"s_and_b32 {S_S}, s2, 7")
elif MAP == 4:
    a(f"s_and_b32 {S_H}, s2, 7")
    a(f"s_lshr_b32 {S_S}, s2, 3")
    a(f"s_and_b32 {S_S}, {S_S}, 3")
    a(f"s_lshl_b32 {S_S}, {S_S}, 3")
    a(f"s_or_b32 {S_H}, {S_H}, {S_S}")
    a(f"s_lshr_b32 {S_S}, s2, 5")
a(f"s_lshl_b32 {S_P}, {S_H}, 3")
a(f"s_or_b32 {S_P}, {S_P}, {S_S}")
a(f"s_cmp_lg_u32 {S_WAVE}, 8")
a("s_cbranch_scc1 L_noinit")
a(f"v_lshlrev_b32 {VT}, 2, {VL}")
a(f"ds_write_b32 {VT}, {VZ}")
a("s_waitcnt lgkmcnt(0)")
a.label("L_noinit")
a("s_barrier")
a(f"s_lshl_b32 s38, {S_P}, 18")
a("s_mov_b32 s42, 0x40000")
a("s_mov_b32 s43, 0x20000")
a("s_mov_b32 s46, 0x40000")
a("s_mov_b32 s47, 0x20000")
a(f"s_cmp_ge_u32 {S_WAVE}, 8")
a("s_waitcnt lgkmcnt(0)")
if DIAG: a("s_memrealtime s[80:81]")
a("s_cbranch_scc1 L_svc")
if ROT == 1:
    a("s_mul_i32 s7, s2, 5"); a("s_and_b32 s7, s7, 31"); a("s_lshl_b32 s7, s7, 13")
elif ROT == 2:
    a(f"s_lshl_b32 s7, {S_S}, 15")
elif ROT == 3:
    a("s_mul_i32 s7, s2, 0x9e3779b1"); a("s_lshr_b32 s7, s7, 27"); a("s_lshl_b32 s7, s7, 13")
a("s_add_u32 s40, s10, s38")
a("s_addc_u32 s41, s11, 0")
a("s_add_u32 s44, s12, s38")
a("s_addc_u32 s45, s13, 0")
sch = Sched()
NA, NB = 0, 64
def slot(kind, i):
    if kind == "K":
        if i < 16: return 4 * i
        if i < 24: return 32 + 4 * (i - 16)
        return 64 + 4 * (i - 24)
    else:
        if i < 8: return 64 + 4 * i
        if i < 16: return 4 * (i - 8)
        if i < 24: return 4 * (i - 16)
        return 32 + 4 * (i - 24)
order = [("K", i) for i in range(16)] + [("V", i) for i in range(16)] + [("K", i) for i in range(16, 32)] + [("V", i) for i in range(16, 32)]
def issue(n):
    k, i = order[n]
    D = DEPTH if n < N2 else DEPTH2
    if n >= D: sch.wait("%s%d" % order[n - D])
    d = slot(k, i)
    srd = KSRD if k == "K" else VSRD
    if ROT:
        a(f"s_add_u32 s67, s7, {i*8192}")
        a("s_and_b32 s67, s67, 0x3ffff")
        a(f"buffer_load_dwordx4 v[{d}:{d+3}], v124, {srd}, s67 offen nt")
    elif i == 0:
        a(f"buffer_load_dwordx4 v[{d}:{d+3}], v124, {srd}, 0 offen nt")
    else:
        a(f"s_mov_b32 s67, {i*8192}")
        a(f"buffer_load_dwordx4 v[{d}:{d+3}], v124, {srd}, s67 offen nt")
    sch.issue(f"{k}{i}")
def qk(i):
    sch.wait(f"K{i}")
    d = slot("K", i)
    for j in range(4 if not NOCOMP else 0):
        a(f"v_dot2c_f32_bf16 v{96 + i % 16}, v{d+j}, v{112+j}")
def pv(j):
    sch.wait(f"V{j}")
    d = slot("V", j)
    for t in range(4 if not NOCOMP else 0):
        a(f"v_dot2c_f32_bf16_dpp v{116+2*t}, v110, v{d+t} row_newbcast:{j % 16} {DPPF}")
        a(f"v_dot2c_f32_bf16_dpp v{117+2*t}, v111, v{d+t} row_newbcast:{j % 16} {DPPF}")
def butterfly():
    for i in range(8):
        a(f"v_add_f32_dpp v{96+i}, v{96+i}, v{96+i} row_ror:8 row_mask:0xf bank_mask:0x3")
        a(f"v_add_f32_dpp v{96+i}, v{104+i}, v{104+i} row_ror:8 row_mask:0xf bank_mask:0xc")
    for i in range(4):
        a(f"v_add_f32_dpp v{96+i}, v{96+i}, v{96+i} row_ror:12 row_mask:0xf bank_mask:0x5")
        a(f"v_add_f32_dpp v{96+i}, v{100+i}, v{100+i} row_ror:4 row_mask:0xf bank_mask:0xa")
    for i in range(4):
        a(f"v_add_f32_dpp v{96+i}, v{96+i}, v{96+i} quad_perm:[2,3,0,1] {DPPF}")
    a("v_cndmask_b32 v96, v96, v98, s[68:69]")
    a("v_cndmask_b32 v97, v97, v99, s[68:69]")
    a(f"v_add_f32_dpp v96, v96, v96 quad_perm:[1,0,3,2] {DPPF}")
    a(f"v_add_f32_dpp v97, v97, v97 quad_perm:[1,0,3,2] {DPPF}")
    a("v_cndmask_b32 v96, v96, v97, s[70:71]")
    a("v_mul_f32 v96, s78, v96")
    a("v_mov_b32 v97, v96")
    wave_reduce_to63("v_max_f32", 97)
C = {n: [] for n in range(64)}
def at(n, f): C[n].append(f)
def setup_scalars():
    ws_srd()
    a("s_mov_b32 s68, 0xcccccccc")
    a("s_mov_b32 s69, 0xcccccccc")
    a("s_mov_b32 s70, 0xaaaaaaaa")
    a("s_mov_b32 s71, 0xaaaaaaaa")
    a(f"s_mov_b32 s78, {f2u(SC):#x}")
    a(f"s_load_dword s6, s[32:33], {EPO}")
    a(f"v_and_b32 v121, 15, {VL}")
    a("v_lshlrev_b32 v121, 4, v121")
    for i in range(16): a(f"v_mov_b32 v{96+i}, 0")
at(DEPTH - 1, setup_scalars)
def qwait():
    if not NOQW: lds_wait_flag(L_FQ)
    a(f"ds_read_b128 v[112:115], v121 offset:{L_Q}")
    stamp(1)
    a("s_waitcnt lgkmcnt(0)")
at(QW, qwait)
qs = QW
for g in range(4):
    for i in range(4 * g, 4 * g + 4): at(qs + g, lambda i=i: qk(i))
def softmax0():
    butterfly()
    a("v_readlane_b32 s72, v97, 63")
    a("v_subrev_f32 v96, s72, v96")
    a("v_exp_f32 v96, v96")
    a("v_cvt_pk_bf16_f32 v110, v96, 0")
    a("v_cvt_pk_bf16_f32 v111, 0, v96")
    a("v_mov_b32 v97, v111")
    wave_reduce_to63("v_add_f32", 97)
    a("v_readlane_b32 s73, v97, 63")
    for j in range(8): a(f"v_mov_b32 v{116+j}, 0")
    make_tags()
    stamp(2)
s0 = qs + 4
at(s0, softmax0)
for j in range(8): at(s0 + 1 + j // 2, lambda j=j: pv(j))
p8 = s0 + 5
pvn = {}
for j in range(8):
    pvn[j] = max(p8 + j // 2, 24 + j + DEPTH)
    at(pvn[j], lambda j=j: pv(8 + j))
nz = pvn[7]
assert s0 + 4 < 40, "PV(V0..7) must finish before K24 issue"
assert nz < 48
def zeroS():
    for i in range(16): a(f"v_mov_b32 v{96+i}, 0")
at(nz, zeroS)
qkn = {}
prev = nz
cnt = 0
for j in range(16):
    n = max(nz, 32 + j + DEPTH)
    while qkn and sum(1 for v in qkn.values() if v == n) >= 3: n += 1
    if qkn: n = max(n, max(qkn.values()))
    while sum(1 for v in qkn.values() if v == n) >= 3: n += 1
    qkn[j] = n
    at(n, lambda j=j: qk(16 + j))
    assert j >= 8 or n < 56 + j, (j, n)
ns = qkn[15]
def softmax1():
    butterfly()
    a("v_readlane_b32 s74, v97, 63")
    a("v_mov_b32 v98, s72")
    a("v_max_f32 v98, s74, v98")
    a("v_sub_f32 v96, v96, v98")
    a("v_sub_f32 v99, s72, v98")
    a("v_exp_f32 v96, v96")
    a("v_exp_f32 v99, v99")
    a("v_readfirstlane_b32 s72, v98")
    a("v_cvt_pk_bf16_f32 v110, v96, 0")
    a("v_cvt_pk_bf16_f32 v111, 0, v96")
    for j in range(8): a(f"v_mul_f32 v{116+j}, v99, v{116+j}")
    a("s_mov_b64 exec, 1")
    a(f"s_lshl_b32 s38, {S_WAVE}, 2")
    a("v_mov_b32 v97, s38")
    a(f"ds_write_b32 v97, v98 offset:{L_M}")
    a("v_mov_b32 v98, 1")
    a(f"ds_add_u32 {VZ}, v98 offset:{L_MC}")
    a("s_mov_b64 exec, -1")
    a("v_mov_b32 v97, v111")
    wave_reduce_to63("v_add_f32", 97)
    a("v_mul_f32 v99, s73, v99")
    a("v_readlane_b32 s73, v97, 63")
    a("v_add_f32 v102, s73, v99")
    stamp(3)
at(ns, softmax1)
done = 16
for n in range(ns + 1, 64):
    k = 0
    while done < 32 and k < 2 and (48 + (done - 16) + DEPTH2) <= n:
        at(n, lambda j=done: pv(j)); done += 1; k += 1
for j in range(8): assert qs + j // 4 < 24 + j
for j in range(8): assert qs + (8 + j) // 4 < 32 + j
for j in range(8): assert pvn[j] < 48 + j
for n in range(64):
    issue(n)
    for f in C[n]: f()
lds_wait_flag(L_MC, "s_cmp_ge_u32", "8", sleep=1)
a(f"v_and_b32 v99, 7, {VL}")
a("v_lshlrev_b32 v99, 2, v99")
a(f"ds_read_b32 v100, v99 offset:{L_M}")
a(f"v_lshrrev_b32 v98, 4, {VL}")
a(f"v_and_b32 v103, 15, {VL}")
a("v_lshlrev_b32 v103, 5, v103")
a("v_lshl_add_u32 v103, v98, 3, v103")
a(f"s_mul_i32 s38, {S_WAVE}, {OPS}")
a("v_add_u32 v104, s38, v103")
a("s_waitcnt lgkmcnt(0)")
a(f"v_max_f32_dpp v100, v100, v100 quad_perm:[1,0,3,2] {DPPF}")
a(f"v_max_f32_dpp v100, v100, v100 quad_perm:[2,3,0,1] {DPPF}")
a(f"v_max_f32_dpp v100, v100, v100 row_half_mirror {DPPF}")
a("v_sub_f32 v101, s72, v100")
a("v_exp_f32 v101, v101")
a(f"s_lshl_b32 s38, {S_WAVE}, 2")
a("v_mov_b32 v99, s38")
a("v_mul_f32 v102, v102, v101")
a("s_mov_b64 exec, 1")
a(f"ds_write_b32 v99, v102 offset:{L_L}")
a("s_mov_b64 exec, -1")
for j in range(done, 32): pv(j)
stamp(4)
rowreduce8(list(range(116, 124)), 116, 117)
a("v_mul_f32 v116, v101, v116")
a("v_mul_f32 v117, v101, v117")
a(f"ds_write_b64 v104, v[116:117] offset:{L_OP}")
a.label("L_barA")
a(f"v_and_b32 v106, 7, {VL}")
a(f"v_mul_u32_u24 v106, {OPS}, v106")
a(f"v_bfe_u32 v107, {VL}, 3, 2")
a("v_lshl_add_u32 v106, v107, 3, v106")
a(f"s_lshl_b32 s38, {S_WAVE}, 5")
a("v_add_u32 v106, s38, v106")
a(f"s_lshl_b32 s38, {S_WAVE}, 4")
a("v_lshl_add_u32 v107, v107, 2, s38")
a("s_mov_b32 s38, 0x01010101")
a("s_mov_b32 s39, 0")
a("s_waitcnt lgkmcnt(0)")
stamp(5)
a("s_barrier")
a(f"ds_read_b64 v[108:109], v106 offset:{L_OP}")
a("s_waitcnt lgkmcnt(0)")
for m in ("quad_perm:[1,0,3,2]", "quad_perm:[2,3,0,1]", "row_half_mirror"):
    a(f"v_add_f32_dpp v108, v108, v108 {m} {DPPF}")
    a(f"v_add_f32_dpp v109, v109, v109 {m} {DPPF}")
a("v_cvt_pk_bf16_f32 v108, v108, v109")
a("s_mov_b64 exec, s[38:39]")
a(f"ds_write_b32 v107, v108 offset:{L_OPK}")
a("s_mov_b64 exec, -1")
a("s_waitcnt lgkmcnt(0)")
a("s_barrier")
a(f"s_cmp_ge_u32 {S_WAVE}, 8")
a("s_cbranch_scc1 L_yphase")
a(f"s_cmp_lg_u32 {S_WAVE}, 0")
a("s_cbranch_scc1 L_pubdone")
a(f"v_and_b32 v99, 7, {VL}")
a("v_lshlrev_b32 v99, 2, v99")
a(f"ds_read_b32 v1, v99 offset:{L_L}")
a("v_mov_b32 v2, s4")
a("v_mov_b32 v3, s5")
a("v_mov_b32 v0, v100")
a("s_waitcnt lgkmcnt(0)")
for m in ("quad_perm:[1,0,3,2]", "quad_perm:[2,3,0,1]", "row_half_mirror"):
    a(f"v_add_f32_dpp v1, v1, v1 {m} {DPPF}")
a(f"s_lshl_b32 s38, {S_P}, 4")
a(f"s_add_u32 s38, s38, {MLB}")
a("s_mov_b64 exec, 1")
a(f"buffer_store_dwordx4 v[0:3], {VZ}, {WSRD}, s38 offen sc1")
a("s_mov_b64 exec, -1")
a("s_branch L_pubdone")
a.label("L_yphase")
a(f"ds_read_b128 v[72:75], v105 offset:{L_OPK}")
a(f"ds_read_b128 v[76:79], v105 offset:{L_OPK+16}")
a("s_waitcnt lgkmcnt(0)")
PMAP = {}
spare = 64
for k in range(8):
    A_, B_ = 8 * k, 8 * k + 4
    PMAP[k] = (spare, B_)
    spare = A_
for k in range(8):
    lo, hi = PMAP[k]
    for j in range(4):
        a(f"v_dot2c_f32_bf16 v{80+2*j}, v{72+k}, v{lo+j}")
        a(f"v_dot2c_f32_bf16 v{81+2*j}, v{72+k}, v{hi+j}")
rowreduce8(list(range(80, 88)), 88, 89)
a(f"v_add_f32_dpp v88, v88, v88 row_ror:8 {DPPF}")
a(f"v_add_f32_dpp v89, v89, v89 row_ror:8 {DPPF}")
a(f"buffer_store_dwordx4 v[88:91], v104, {WSRD}, s79 offen sc1")
stamp(6)
a.label("L_pubdone")
a("s_cmp_ge_u32 s2, 0" if NORED else "s_cmp_ge_u32 s2, 32")
a("s_cbranch_scc1 L_fin")
a(f"s_lshl_b32 s38, {S_WAVE}, 6")
a(f"v_add_u32 v99, s38, {VL}")
a("v_lshlrev_b32 v98, 5, v99")
a("v_lshrrev_b32 v97, 2, v99")
a("v_lshlrev_b32 v97, 4, v97")
a("s_lshl_b32 s38, s2, 14")
a(f"s_add_u32 s38, s38, {YBB}")
a("s_add_u32 s52, s32, s38")
a("s_addc_u32 s53, s33, 0")
a(f"s_mov_b32 s54, {86*128}")
a("s_mov_b32 s55, 0x20000")
a("s_lshl_b32 s38, s2, 15")
a(f"s_add_u32 s38, s38, {YMB}")
a(f"s_mov_b32 s39, {MLB}")
a(f"ds_read_b64 v[24:25], {VZ} offset:{L_G}")
a("s_mov_b32 s79, 0x158")
a("v_cmp_gt_u32 s[72:73], s79, v99")
a(f"s_mov_b32 s75, {TMO_MEM}")
a.label("L_mlpoll")
a(f"buffer_load_dwordx4 v[8:11], v97, {WSRD}, s39 offen sc1")
a("s_waitcnt vmcnt(0)")
tag_bad([8], 20, 21)
a("s_cbranch_vccz L_mlok")
timeout_check()
a("s_sleep 2")
a("s_branch L_mlpoll")
a.label("L_mlok")
a.label("L_rpoll")
a(f"buffer_load_dwordx4 v[0:3], v98, {WSRD}, s38 offen sc1")
a(f"buffer_load_dwordx4 v[4:7], v98, {WSRD}, s38 offen offset:16 sc1")
a(f"buffer_load_dwordx4 v[12:15], v98, {TSRD}, 0 offen sc1")
a(f"buffer_load_dwordx4 v[16:19], v98, {TSRD}, 0 offen offset:16 sc1")
a("v_mov_b32 v26, v8")
a(f"v_max_f32_dpp v26, v26, v26 row_ror:4 {DPPF}")
a(f"v_max_f32_dpp v26, v26, v26 row_ror:8 {DPPF}")
a("v_mov_b32 v27, v26")
a("v_permlane16_swap_b32 v26, v27")
a("v_max_f32 v26, v26, v27")
a("v_sub_f32 v26, v8, v26")
a("v_exp_f32 v26, v26")
a("v_mul_f32 v28, v26, v9")
a(f"v_add_f32_dpp v28, v28, v28 row_ror:4 {DPPF}")
a(f"v_add_f32_dpp v28, v28, v28 row_ror:8 {DPPF}")
a("v_mov_b32 v27, v28")
a("v_permlane16_swap_b32 v28, v27")
a("v_add_f32 v28, v28, v27")
a("v_rcp_f32 v28, v28")
a("s_waitcnt lgkmcnt(0)")
a("v_mul_f32 v26, v26, v24")
a("v_mul_f32 v26, v26, v28")
a("s_waitcnt vmcnt(0)")
tag_bad([12, 16], 20, 21)
a("s_and_b64 s[76:77], vcc, s[72:73]")
tag_bad([0, 4], 20, 21)
a("s_or_b64 s[76:77], s[76:77], vcc")
a("s_cmp_eq_u64 s[76:77], 0")
a("s_cbranch_scc1 L_rok")
timeout_check()
a("s_branch L_rpoll")
a.label("L_rok")
stamp(7)
a("v_mul_f32 v12, v25, v12")
a("v_mul_f32 v13, v25, v13")
a("v_mul_f32 v16, v25, v16")
a("v_mul_f32 v17, v25, v17")
a("v_fma_f32 v2, v26, v4, v16")
a("v_fma_f32 v3, v26, v5, v17")
a("v_fma_f32 v0, v26, v0, v12")
a("v_fma_f32 v1, v26, v1, v13")
red16([0, 1, 2, 3])
a(f"v_and_b32 v8, 3, {VL}")
a("v_lshlrev_b32 v8, 4, v8")
a(f"v_lshrrev_b32 v9, 4, {VL}")
a("v_lshl_add_u32 v8, v9, 2, v8")
a(f"s_lshl_b32 s38, {S_WAVE}, 6")
a("v_add_u32 v9, s38, v8")
a("s_mov_b32 s38, 0x000f000f")
a("s_mov_b32 s39, 0x000f000f")
a("s_mov_b64 exec, s[38:39]")
a(f"ds_write_b32 v9, v0 offset:{L_RED}")
a("s_mov_b64 exec, -1")
a("s_waitcnt lgkmcnt(0)")
a("s_barrier")
a(f"s_cmp_lg_u32 {S_WAVE}, 0")
a("s_cbranch_scc1 L_fin")
a(f"v_lshlrev_b32 v9, 4, {VL}")
a(f"ds_read_b128 v[0:3], v9 offset:{L_RED}")
a("v_lshrrev_b32 v8, 1, v8")
a("s_lshl_b32 s79, s2, 5")
a("s_mov_b32 s52, s28")
a("s_mov_b32 s53, s29")
a("s_mov_b32 s54, 1024")
a("s_mov_b32 s55, 0x20000")
a("v_mov_b32 v4, s4")
a("s_waitcnt lgkmcnt(0)")
red16([0, 1, 2, 3])
a("v_cvt_pk_bf16_f32 v0, v0, 0")
a("s_mov_b64 exec, s[38:39]")
a(f"buffer_store_short v0, v8, {TSRD}, s79 offen")
a("s_cmp_lg_u32 s2, 0")
a("s_cbranch_scc1 L_fin")
a("s_mov_b64 exec, 1")
a(f"s_mov_b32 s38, {EPO}")
a(f"buffer_store_dword v4, {VZ}, {WSRD}, s38 offen sc1")
a.label("L_fin")
a("s_mov_b64 exec, -1")
if DIAG:
    a("s_memrealtime s[96:97]")
    a("s_waitcnt lgkmcnt(0)")
    for k in range(11): a(f"v_mov_b32 v{k}, s{80+2*k}")
    a("s_getreg_b32 s38, hwreg(HW_REG_XCC_ID)")
    a("v_mov_b32 v11, s38")
    a("s_lshl_b32 s38, s2, 4")
    a(f"s_add_u32 s38, s38, {S_WAVE}")
    a("s_lshl_b32 s38, s38, 6")
    a(f"s_add_u32 s38, s38, {DIAGO}")
    a("s_mov_b64 exec, 1")
    a(f"buffer_store_dwordx4 v[0:3], {VZ}, {WSRD}, s38 offen")
    a(f"buffer_store_dwordx4 v[4:7], {VZ}, {WSRD}, s38 offen offset:16")
    a(f"buffer_store_dwordx4 v[8:11], {VZ}, {WSRD}, s38 offen offset:32")
if DBG:
    a("s_cmp_ge_u32 s2, 8")
    a("s_cbranch_scc1 L_end")
    a(f"s_cmp_lg_u32 {S_WAVE}, 0")
    a("s_cbranch_scc1 L_end")
    a("s_memrealtime s[92:93]")
    a("s_waitcnt lgkmcnt(0)")
    a("v_mov_b32 v0, s90")
    a("v_mov_b32 v1, s92")
    a("s_mov_b32 s52, s30")
    a("s_mov_b32 s53, s31")
    a("s_mov_b32 s54, 256")
    a("s_mov_b32 s55, 0x20000")
    a("s_lshl_b32 s38, s2, 3")
    a("s_mov_b64 exec, 1")
    a(f"buffer_store_dwordx2 v[0:1], {VZ}, {TSRD}, s38 offen")
a.label("L_end")
a("s_endpgm")

a.label("L_svc")
ws_srd()
if NOSVC:
    a("s_mov_b32 s79, 0x7fffffff")
    a("v_mov_b32 v104, 0")
    a("v_mov_b32 v105, 0")
    a("s_branch L_barA")
a(f"s_load_dword s6, s[32:33], {EPO}")
a(f"s_cmp_eq_u32 {S_WAVE}, 9")
a("s_cbranch_scc1 L_b1")
a(f"s_cmp_eq_u32 {S_WAVE}, 10")
a("s_cbranch_scc1 L_b2")
a(f"s_cmp_eq_u32 {S_WAVE}, 11")
a("s_cbranch_scc1 L_gate")
a(f"s_cmp_lg_u32 {S_WAVE}, 8")
a("s_cbranch_scc1 L_wo")
a(f"s_lshl_b32 s38, {S_S}, 19")
a(f"s_lshl_b32 s39, {S_H}, 8")
a("s_add_u32 s38, s38, s39")
a("s_add_u32 s52, s14, s38")
a("s_addc_u32 s53, s15, 0")
a("s_sub_u32 s54, 0x400000, s38")
a("s_mov_b32 s55, 0x20000")
a(f"v_lshrrev_b32 v122, 4, {VL}")
a(f"v_and_b32 v121, 15, {VL}")
a("v_lshlrev_b32 v120, 17, v122")
a("v_lshl_add_u32 v120, v121, 4, v120")
a("v_lshlrev_b32 v119, 5, v122")
a(f"s_lshl_b32 s38, {S_S}, 7")
a("v_add_u32 v119, s38, v119")
a("global_load_dwordx4 v[64:67], v119, s[8:9]")
a("global_load_dwordx4 v[68:71], v119, s[8:9] offset:16")
for i in range(16 if not NOWQ else 0):
    a(f"buffer_load_dwordx4 v[{4*i}:{4*i+3}], v120, {TSRD}, 0 offen nt")
    if i < 15: a("v_add_u32 v120, 0x2000, v120")
for j in range(8): a(f"v_mov_b32 v{104+j}, 0")
a("s_waitcnt vmcnt(16)")
for k in range(8):
    a(f"v_and_b32 v{72+4*k}, 0xffff, v{64+k}")
    a(f"v_lshlrev_b32 v{73+4*k}, 16, v{64+k}")
    a(f"v_lshrrev_b32 v{74+4*k}, 16, v{64+k}")
    a(f"v_and_b32 v{75+4*k}, 0xffff0000, v{64+k}")
for i in range(16):
    a(f"s_waitcnt vmcnt({15 - i})")
    for j in range(4):
        a(f"v_dot2c_f32_bf16 v{104+2*j}, v{72+2*i}, v{4*i+j}")
        a(f"v_dot2c_f32_bf16 v{105+2*j}, v{73+2*i}, v{4*i+j}")
rowreduce8(list(range(104, 112)), 104, 105)
a("s_waitcnt lgkmcnt(0)")
make_tags()
a("v_mov_b32 v106, s4")
a("v_mov_b32 v107, s5")
a("v_lshlrev_b32 v119, 6, v121")
a("v_lshl_add_u32 v119, v122, 4, v119")
a(f"s_lshl_b32 s79, {S_P}, 10")
a(f"buffer_store_dwordx4 v[104:107], v119, {WSRD}, s79 offen sc1")
stamp(9)
if QACK: a("s_waitcnt vmcnt(0)")
a(f"v_lshlrev_b32 v119, 4, {VL}")
a(f"s_lshl_b32 s79, {S_H}, 13")
a("s_add_u32 s38, s79, 4096")
a(f"s_mov_b32 s75, {TMO_MEM}")
a.label("L_qpoll")
if NOQP: a("s_branch L_qok")
for i in range(8):
    so = "s79" if i < 4 else "s38"
    a(f"buffer_load_dwordx4 v[{4*i}:{4*i+3}], v119, {WSRD}, {so} offen offset:{1024*(i%4)} sc1")
a("s_waitcnt vmcnt(0)")
tag_bad([4*i for i in range(8)], 32, 33)
a("s_cbranch_vccz L_qok")
timeout_check()
a("s_branch L_qpoll")
a.label("L_qok")
for j in range(2):
    a(f"v_add_f32 v{j}, v{j}, v{4+j}")
    a(f"v_add_f32 v{8+j}, v{8+j}, v{12+j}")
    a(f"v_add_f32 v{16+j}, v{16+j}, v{20+j}")
    a(f"v_add_f32 v{24+j}, v{24+j}, v{28+j}")
for j in range(2):
    a(f"v_add_f32 v{j}, v{j}, v{8+j}")
    a(f"v_add_f32 v{16+j}, v{16+j}, v{24+j}")
for j in range(2): a(f"v_add_f32 v{j}, v{j}, v{16+j}")
a("v_cvt_pk_bf16_f32 v0, v0, v1")
a(f"v_lshlrev_b32 v119, 2, {VL}")
a(f"ds_write_b32 v119, v0 offset:{L_Q}")
a("s_waitcnt lgkmcnt(0)")
lds_set_flag(L_FQ)
stamp(10)
a("s_branch L_wo2")

a.label("L_b1")
if NOB1: a("s_branch L_wo")
a("s_cmp_ge_u32 s2, 172")
a("s_cbranch_scc1 L_wo")
a("s_and_b32 s38, s2, 3")
a(f"s_mul_i32 s39, s38, {64*5504}")
a("s_lshr_b32 s79, s2, 2")
a("s_lshl_b32 s74, s79, 7")
a("s_add_u32 s39, s39, s74")
a("s_add_u32 s52, s20, s39")
a("s_addc_u32 s53, s21, 0")
a(f"s_sub_u32 s54, {512*2752}, s39")
a("s_mov_b32 s55, 0x20000")
a("s_add_u32 s48, s22, s39")
a("s_addc_u32 s49, s23, 0")
a("s_mov_b32 s50, s54")
a("s_mov_b32 s51, 0x20000")
a(f"v_lshrrev_b32 v122, 3, {VL}")
a(f"v_and_b32 v121, 7, {VL}")
a(f"v_mul_u32_u24 v120, {8*5504}, v122")
a("v_lshl_add_u32 v120, v121, 4, v120")
a("v_lshlrev_b32 v119, 5, v122")
a("s_lshl_b32 s38, s38, 8")
a("v_add_u32 v119, s38, v119")
a("global_load_dwordx4 v[64:67], v119, s[8:9]")
a("global_load_dwordx4 v[68:71], v119, s[8:9] offset:16")
a("s_lshl_b32 s74, s79, 6")
a("v_lshl_add_u32 v118, v121, 3, s74")
a("s_movk_i32 s74, 1375")
a("v_cmp_lt_u32 vcc, s74, v118")
a("v_cndmask_b32 v118, 0, 16, vcc")
nl = 0
for i in range(8):
    for srd, base in ((TSRD, 0), (WOSRD, 32)):
        if nl >= BD: a(f"s_waitcnt vmcnt({BD-1})")
        a(f"buffer_load_dwordx4 v[{base+4*i}:{base+4*i+3}], v120, {srd}, 0 offen nt"); nl += 1
    if i < 7: a("v_add_u32 v120, 5504, v120")
for j in range(16): a(f"v_mov_b32 v{96+j}, 0")
a("s_waitcnt vmcnt(0)")
for i in range(8):
    a(f"v_lshrrev_b32 v117, v118, v{64+i}")
    a(f"v_and_b32 v{72+2*i}, 0xffff, v117")
    a(f"v_lshlrev_b32 v{73+2*i}, 16, v117")
for i in range(8):
    for j in range(4):
        a(f"v_dot2c_f32_bf16 v{96+2*j}, v{72+2*i}, v{4*i+j}")
        a(f"v_dot2c_f32_bf16 v{97+2*j}, v{73+2*i}, v{4*i+j}")
        a(f"v_dot2c_f32_bf16 v{104+2*j}, v{72+2*i}, v{32+4*i+j}")
        a(f"v_dot2c_f32_bf16 v{105+2*j}, v{73+2*i}, v{32+4*i+j}")
for b in (96, 104):
    for j in range(4): a(f"v_permlane32_swap_b32 v{b+j}, v{b+4+j}")
for b in (96, 104):
    for j in range(4): a(f"v_add_f32 v{b+j}, v{b+j}, v{b+4+j}")
for b in (96, 104):
    for j in range(2): a(f"v_permlane16_swap_b32 v{b+j}, v{b+2+j}")
for b in (96, 104):
    for j in range(2): a(f"v_add_f32 v{b+j}, v{b+j}, v{b+2+j}")
for b in (96, 104):
    a(f"v_add_f32_dpp v{b}, v{b}, v{b} row_ror:8 row_mask:0xf bank_mask:0x3")
    a(f"v_add_f32_dpp v{b}, v{b+1}, v{b+1} row_ror:8 row_mask:0xf bank_mask:0xc")
a("s_waitcnt lgkmcnt(0)")
make_tags()
a("v_mov_b32 v97, v104")
a("v_mov_b32 v98, s4")
a("v_mov_b32 v99, s5")
a(f"v_bfe_u32 v100, {VL}, 5, 1")
a("v_lshlrev_b32 v100, 2, v100")
a(f"v_bfe_u32 v101, {VL}, 4, 1")
a("v_lshl_add_u32 v100, v101, 1, v100")
a(f"v_bfe_u32 v101, {VL}, 3, 1")
a("v_add_u32 v100, v100, v101")
a("v_lshl_add_u32 v100, v121, 3, v100")
a("v_lshlrev_b32 v100, 4, v100")
a("s_lshl_b32 s79, s2, 10")
a(f"s_add_u32 s79, s79, {BMB}")
a(f"buffer_store_dwordx4 v[96:99], v100, {WSRD}, s79 offen sc1")
stamp(9)
a("s_branch L_wo")

a.label("L_b2")
if NOB2: a("s_branch L_wo")
a("s_cmp_lt_u32 s2, 170")
a("s_cbranch_scc1 L_wo")
a("s_sub_u32 s79, s2, 170")
a("s_lshl_b32 s38, s79, 14")
a("s_add_u32 s52, s24, s38")
a("s_addc_u32 s53, s25, 0")
a("s_mov_b32 s54, 16384")
a("s_mov_b32 s55, 0x20000")
a(f"v_lshlrev_b32 v102, 4, {VL}")
for i in range(16):
    if i >= BD: a(f"s_waitcnt vmcnt({BD-1})")
    a(f"s_mov_b32 s67, {i*1024}")
    a(f"buffer_load_dwordx4 v[{4*i}:{4*i+3}], v102, {TSRD}, s67 offen nt")
a(f"v_and_b32 v114, 15, {VL}")
a("s_lshl_b32 s38, s79, 4")
a("v_add_u32 v114, s38, v114")
a("v_add_u32 v115, 1376, v114")
a(f"v_lshrrev_b32 v103, 4, {VL}")
a("v_lshlrev_b32 v103, 10, v103")
for r, d in ((114, 116), (115, 117)):
    a(f"v_lshrrev_b32 v{d}, 6, v{r}")
    a(f"v_lshlrev_b32 v{d}, 12, v{d}")
    a(f"v_and_b32 v{r}, 63, v{r}")
    a(f"v_lshl_add_u32 v{d}, v{r}, 4, v{d}")
    a(f"v_add_u32 v{d}, v{d}, v103")
lds_wait_flag(L_FQ, sleep=8)
a(f"s_mov_b32 s38, {BMB}")
make_tags()
a(f"s_mov_b32 s75, {TMO_MEM}")
a.label("L_bpoll")
if NOB1: a("s_branch L_bok")
a(f"buffer_load_dwordx4 v[104:107], v116, {WSRD}, s38 offen sc1")
a(f"buffer_load_dwordx4 v[108:111], v117, {WSRD}, s38 offen sc1")
a("s_waitcnt vmcnt(0)")
tag_bad([104, 108], 100, 101)
a("s_cbranch_vccz L_bok")
timeout_check()
a("s_sleep 8")
a("s_branch L_bpoll")
a.label("L_bok")
a("v_add_f32 v112, v104, v108")
a("v_add_f32 v113, v105, v109")
for r in (112, 113):
    a(f"v_mov_b32 v100, v{r}")
    a(f"v_permlane16_swap_b32 v{r}, v100")
    a(f"v_add_f32 v{r}, v{r}, v100")
    a(f"v_mov_b32 v100, v{r}")
    a(f"v_permlane32_swap_b32 v{r}, v100")
    a(f"v_add_f32 v{r}, v{r}, v100")
rb16(112, 112)
rb16(113, 113)
a("v_mul_f32 v114, v112, v113")
a("v_cvt_pk_bf16_f32 v112, v114, 0")
a("v_cvt_pk_bf16_f32 v113, 0, v114")
for j in range(8): a(f"v_mov_b32 v{96+j}, 0")
for i in range(16):
    for j in range(4):
        a(f"v_dot2c_f32_bf16_dpp v{96+2*j}, v112, v{4*i+j} row_newbcast:{i} {DPPF}")
        a(f"v_dot2c_f32_bf16_dpp v{97+2*j}, v113, v{4*i+j} row_newbcast:{i} {DPPF}")
a(f"v_lshlrev_b32 v114, 5, {VL}")
a(f"ds_write_b128 v114, v[96:99] offset:{L_YT}")
a(f"ds_write_b128 v114, v[100:103] offset:{L_YT+16}")
a(f"v_lshlrev_b32 v114, 3, {VL}")
a("s_waitcnt lgkmcnt(0)")
for k in range(4):
    a(f"ds_read_b64 v[{96+4*k}:{97+4*k}], v114 offset:{L_YT + 512*k}")
for k in range(4):
    a(f"v_mov_b32 v{98+4*k}, s4")
    a(f"v_mov_b32 v{99+4*k}, s5")
a(f"v_lshrrev_b32 v114, 3, {VL}")
a("v_lshlrev_b32 v114, 14, v114")
a(f"v_and_b32 v115, 7, {VL}")
a("v_lshl_add_u32 v114, v115, 4, v114")
a("s_lshl_b32 s38, s79, 7")
a(f"s_add_u32 s38, s38, {YBB}")
a("s_waitcnt lgkmcnt(0)")
for k in range(4):
    a(f"buffer_store_dwordx4 v[{96+4*k}:{99+4*k}], v114, {WSRD}, s38 offen sc1")
    if k < 3: a("s_add_u32 s38, s38, 0x20000")
stamp(9)
a("s_branch L_wo")

a.label("L_gate")
a("s_cmp_ge_u32 s2, 32")
a("s_cbranch_scc1 L_wo")
a(f"v_lshlrev_b32 v102, 4, {VL}")
a("global_load_dwordx4 v[8:11], v102, s[8:9]")
a("global_load_dwordx4 v[12:15], v102, s[26:27]")
a("v_mov_b32 v16, 0")
a("s_mov_b32 s38, 0x3f803f80")
a("s_waitcnt vmcnt(0)")
for j in range(4):
    a(f"v_lshlrev_b32 v17, 16, v{8+j}")
    a(f"v_lshlrev_b32 v18, 16, v{12+j}")
    a(f"v_and_b32 v19, 0xffff0000, v{8+j}")
    a(f"v_and_b32 v20, 0xffff0000, v{12+j}")
    a("v_mul_f32 v17, v17, v18")
    a("v_mul_f32 v19, v19, v20")
    a("v_cvt_pk_bf16_f32 v17, v17, v19")
    a("v_dot2c_f32_bf16 v16, s38, v17")
wave_reduce_to63("v_add_f32", 16)
a("v_readlane_b32 s38, v16, 63")
a("v_mov_b32 v16, s38")
rb16(16, 16)
a(f"v_mul_f32 v16, {f2u(-1.4426950408889634):#x}, v16")
a("v_exp_f32 v16, v16")
a("v_add_f32 v16, 1.0, v16")
a("v_rcp_f32 v16, v16")
rb16(16, 16)
a("v_sub_f32 v17, 1.0, v16")
rb16(17, 17)
a("s_mov_b64 exec, 1")
a(f"ds_write_b64 {VZ}, v[16:17] offset:{L_G}")
a("s_mov_b64 exec, -1")
a.label("L_wo")
lds_wait_flag(L_FQ, sleep=8)
a.label("L_wo2")
a(f"s_lshl_b32 s38, {S_H}, 17")
a("s_add_u32 s48, s16, s38")
a("s_addc_u32 s49, s17, 0")
a("s_mov_b32 s50, 0x20000")
a("s_mov_b32 s51, 0x20000")
a("s_mov_b32 s76, 0x05040100")
a("s_mov_b32 s77, 0x07060302")
a(f"v_lshrrev_b32 v122, 3, {VL}")
a(f"v_and_b32 v121, 7, {VL}")
a("v_lshlrev_b32 v120, 14, v122")
a("v_lshl_add_u32 v120, v121, 4, v120")
a(f"s_sub_u32 s74, {S_WAVE}, 8")
a("s_lshl_b32 s38, s74, 7")
a("v_add_u32 v120, s38, v120")
sw = Sched()
for i in range(16):
    if i >= WOD and not NOWO: sw.wait(f"W{i-WOD}")
    a(f"s_mov_b32 s67, {i*1024}")
    if not NOWO: a(f"buffer_load_dwordx4 v[{4*i}:{4*i+3}], v120, {WOSRD}, s67 offen nt")
    sw.issue(f"W{i}")
a("v_lshlrev_b32 v105, 5, v122")
a(f"v_bfe_u32 v100, {VL}, 5, 1")
a("v_lshlrev_b32 v100, 1, v100")
a(f"v_bfe_u32 v101, {VL}, 4, 1")
a("v_add_u32 v100, v100, v101")
a("v_lshl_add_u32 v100, v121, 2, v100")
a("v_lshrrev_b32 v101, 3, v100")
a("v_lshlrev_b32 v101, 15, v101")
a("v_and_b32 v100, 7, v100")
a("v_lshl_add_u32 v104, v100, 4, v101")
a(f"v_bfe_u32 v101, {VL}, 3, 1")
a("v_lshl_or_b32 v104, v101, 31, v104")
a("s_lshl_b32 s38, s74, 17")
a(f"s_lshl_b32 s79, {S_P}, 7")
a("s_add_u32 s79, s79, s38")
a(f"s_add_u32 s79, s79, {YMB}")
a("s_waitcnt lgkmcnt(0)")
make_tags()
a("v_mov_b32 v90, s4")
a("v_mov_b32 v91, s5")
for k in range(8):
    sw.wait(f"W{2*k+1}")
    lo, hi = PMAP[k]
    A_, B_ = 8 * k, 8 * k + 4
    for j in range(4): a(f"v_perm_b32 v{lo+j}, v{B_+j}, v{A_+j}, s76")
    for j in range(4): a(f"v_perm_b32 v{hi+j}, v{B_+j}, v{A_+j}, s77")
for j in range(80, 88): a(f"v_mov_b32 v{j}, 0")
stamp(4)
a("s_branch L_barA")

src = header(256, 1024, LDS_SIZE) + kstart() + a.text() + kdesc(vgpr=128, sgpr=102 if (DIAG or DBG) else 80)
open(OUT, "w").write(src)
print("lines", len(a.lines), "lds", LDS_SIZE)
```

```python
import sys, struct
from emit import Asm
from hdr import *

DIAG = "-diag" in sys.argv
OUT = sys.argv[1]
def opt(name, default):
    for x in sys.argv:
        if x.startswith(f"-{name}="): return int(x.split("=")[1])
    return default
DEPTH = opt("depth", 3)
WOD = opt("wod", 2)
DEPTH2 = opt("depth2", 8)
N2 = opt("n2", 48)
BD = opt("bd", 4)
NORED = "-nored" in sys.argv
DBG = "-dbg" in sys.argv
NOCOMP = "-nocomp" in sys.argv
NOQW = "-noqw" in sys.argv
NOSVC = "-nosvc" in sys.argv
NOQP = "-noqp" in sys.argv
NOB1 = "-nob1" in sys.argv
NOB2 = "-nob2" in sys.argv
NOWO = "-nowo" in sys.argv
NOWQ = "-nowq" in sys.argv
QACK = "-noqack" not in sys.argv
QW = opt("qw", 23)
MAP = opt("map", 0)
ROT = opt("rot", 0)
OADD = "-oadd" in sys.argv
OUTSC = opt("outsc", 0)
MLE = "-nomle" not in sys.argv
def f2u(x): return struct.unpack("<I", struct.pack("<f", x))[0]

QMB, BMB, QM2, MLB, EPO, YBB, YMB, DIAGO = 0x0, 0x40000, 0x6C000, 0x70000, 0x7F000, 0x80000, 0x100000, 0x200000
WS_SIZE = 0x300000
L_FQ, L_MC, L_LC = 8, 12, 16
L_OA = 0x800
L_M, L_L, L_Q, L_OPK, L_G = 0x40, 0x80, 0x100, 0x200, 0x340
L_OP, OPS = 0x400, 544
L_RED = 0x400 + 8 * 544
L_YT = L_RED + 1024
LDS_SIZE = L_YT + 2048
SC = (128 ** -0.5) * 1.4426950408889634
TMO_LDS = 1 << 20
TMO_MEM = 1 << 16

a = Asm()
DPPF = "row_mask:0xf bank_mask:0xf"
S_WAVE, S_H, S_S, S_P = "s34", "s35", "s36", "s37"
KSRD, VSRD, WOSRD, TSRD, WSRD = "s[40:43]", "s[44:47]", "s[48:51]", "s[52:55]", "s[60:63]"
VL, VZ, VT = "v125", "v127", "v126"

def stamp(idx):
    if DIAG: a(f"s_memrealtime s[{80+2*idx}:{81+2*idx}]")
def timeout_check(lbl_abort="L_end"):
    a("s_sub_u32 s75, s75, 1")
    a("s_cmp_eq_u32 s75, 0")
    a(f"s_cbranch_scc1 {lbl_abort}")
_lc = [0]
def newlabel(p):
    _lc[0] += 1
    return f"L_{p}{_lc[0]}"
def lds_wait_flag(off, cmp_op="s_cmp_lg_u32", val="0", sleep=2):
    l0, l1 = newlabel("lw"), newlabel("lwd")
    a(f"s_mov_b32 s75, {TMO_LDS}")
    a.label(l0)
    a(f"ds_read_b32 {VT}, {VZ} offset:{off}")
    a("s_waitcnt lgkmcnt(0)")
    a(f"v_readfirstlane_b32 s38, {VT}")
    a(f"{cmp_op} s38, {val}")
    a(f"s_cbranch_scc1 {l1}")
    timeout_check()
    a(f"s_sleep {sleep}")
    a(f"s_branch {l0}")
    a.label(l1)
def lds_set_flag(off):
    a("s_mov_b64 exec, 1")
    a(f"v_mov_b32 {VT}, 1")
    a(f"ds_write_b32 {VZ}, {VT} offset:{off}")
    a("s_mov_b64 exec, -1")
def rowreduce8(acc, o0, o1):
    for j in range(4): a(f"v_permlane32_swap_b32 v{acc[j]}, v{acc[j+4]}")
    for j in range(4): a(f"v_add_f32 v{acc[j]}, v{acc[j]}, v{acc[j+4]}")
    a(f"v_permlane16_swap_b32 v{acc[0]}, v{acc[2]}")
    a(f"v_permlane16_swap_b32 v{acc[1]}, v{acc[3]}")
    a(f"v_add_f32 v{o0}, v{acc[0]}, v{acc[2]}")
    a(f"v_add_f32 v{o1}, v{acc[1]}, v{acc[3]}")
def row_allreduce(op, reg):
    for n in (8, 4, 2, 1):
        a(f"{op}_dpp v{reg}, v{reg}, v{reg} row_ror:{n} {DPPF}")
def wave_reduce_to63(op, reg):
    row_allreduce(op, reg)
    a(f"{op}_dpp v{reg}, v{reg}, v{reg} row_bcast:15 row_mask:0xa bank_mask:0xf")
    a(f"{op}_dpp v{reg}, v{reg}, v{reg} row_bcast:31 row_mask:0xc bank_mask:0xf")
def rb16(dst, src):
    a(f"v_cvt_pk_bf16_f32 v{dst}, 0, v{src}")
def red16(regs):
    for n in (4, 8):
        for r in regs: a(f"v_add_f32_dpp v{r}, v{r}, v{r} row_ror:{n} {DPPF}")
    a(f"v_permlane32_swap_b32 v{regs[0]}, v{regs[2]}")
    a(f"v_permlane32_swap_b32 v{regs[1]}, v{regs[3]}")
    a(f"v_add_f32 v{regs[0]}, v{regs[0]}, v{regs[2]}")
    a(f"v_add_f32 v{regs[1]}, v{regs[1]}, v{regs[3]}")
    a(f"v_permlane16_swap_b32 v{regs[0]}, v{regs[1]}")
    a(f"v_add_f32 v{regs[0]}, v{regs[0]}, v{regs[1]}")
def tag_bad(grans, acc, t):
    first = True
    for g in grans:
        if first:
            a(f"v_xor_b32 v{acc}, s4, v{g+2}")
            a(f"v_xor_b32 v{t}, s5, v{g+3}")
            a(f"v_or_b32 v{acc}, v{acc}, v{t}")
            first = False
        else:
            a(f"v_xor_b32 v{t}, s4, v{g+2}")
            a(f"v_or_b32 v{acc}, v{acc}, v{t}")
            a(f"v_xor_b32 v{t}, s5, v{g+3}")
            a(f"v_or_b32 v{acc}, v{acc}, v{t}")
    a(f"v_cmp_ne_u32 vcc, 0, v{acc}")
def make_tags():
    a("s_add_u32 s4, s6, 1")
    a("s_mul_i32 s5, s4, 0x9e3779b1")
    a("s_xor_b32 s5, s5, 0x5bd1e995")
class Sched:
    def __init__(self): self.issued = []; self.landed = -1
    def issue(self, name): self.issued.append(name)
    def wait(self, name):
        idx = self.issued.index(name)
        if idx > self.landed:
            a(f"s_waitcnt vmcnt({len(self.issued) - 1 - idx})")
            self.landed = idx
def ws_srd():
    a("s_mov_b32 s60, s32")
    a("s_mov_b32 s61, s33")
    a(f"s_mov_b32 s62, {WS_SIZE}")
    a("s_mov_b32 s63, 0x20000")

if DBG: a("s_memrealtime s[90:91]")
a("s_load_dwordx16 s[8:23], s[0:1], 0")
a("s_load_dwordx8 s[24:31], s[0:1], 64")
a("s_load_dwordx2 s[32:33], s[0:1], 96")
a("s_cmp_ge_u32 s2, 256")
a("s_cbranch_scc1 L_end")
a(f"v_and_b32 {VL}, 63, v0")
a(f"v_lshrrev_b32 {VT}, 6, v0")
a(f"v_mov_b32 {VZ}, 0")
a(f"v_readfirstlane_b32 {S_WAVE}, {VT}")
a("v_lshlrev_b32 v124, 4, v0")
if MAP in (0, 1, 3):
    a(f"s_and_b32 {S_H}, s2, 7")
    if MAP == 1: a(f"s_xor_b32 {S_H}, {S_H}, 4")
    if MAP == 3: a(f"s_xor_b32 {S_H}, {S_H}, 2")
    a(f"s_lshl_b32 {S_H}, {S_H}, 2")
    a(f"s_lshr_b32 {S_S}, s2, 3")
    a(f"s_and_b32 {S_S}, {S_S}, 3")
    a(f"s_or_b32 {S_H}, {S_H}, {S_S}")
    a(f"s_lshr_b32 {S_S}, s2, 5")
elif MAP == 2:
    a(f"s_lshr_b32 {S_H}, s2, 3")
    a(f"s_and_b32 {S_S}, s2, 7")
elif MAP == 4:
    a(f"s_and_b32 {S_H}, s2, 7")
    a(f"s_lshr_b32 {S_S}, s2, 3")
    a(f"s_and_b32 {S_S}, {S_S}, 3")
    a(f"s_lshl_b32 {S_S}, {S_S}, 3")
    a(f"s_or_b32 {S_H}, {S_H}, {S_S}")
    a(f"s_lshr_b32 {S_S}, s2, 5")
a(f"s_lshl_b32 {S_P}, {S_H}, 3")
a(f"s_or_b32 {S_P}, {S_P}, {S_S}")
a(f"s_cmp_lg_u32 {S_WAVE}, 8")
a("s_cbranch_scc1 L_noinit")
a(f"v_lshlrev_b32 {VT}, 2, {VL}")
a(f"ds_write_b32 {VT}, {VZ}")
if OADD:
    a(f"ds_write_b32 {VT}, {VZ} offset:{L_OA}")
    a(f"ds_write_b32 {VT}, {VZ} offset:{L_OA+256}")
a("s_waitcnt lgkmcnt(0)")
a.label("L_noinit")
a("s_barrier")
a(f"s_lshl_b32 s38, {S_P}, 18")
a("s_mov_b32 s42, 0x40000")
a("s_mov_b32 s43, 0x20000")
a("s_mov_b32 s46, 0x40000")
a("s_mov_b32 s47, 0x20000")
a(f"s_cmp_ge_u32 {S_WAVE}, 8")
a("s_waitcnt lgkmcnt(0)")
if DIAG: a("s_memrealtime s[80:81]")
a("s_cbranch_scc1 L_svc")
if ROT == 1:
    a("s_mul_i32 s7, s2, 5"); a("s_and_b32 s7, s7, 31"); a("s_lshl_b32 s7, s7, 13")
elif ROT == 2:
    a(f"s_lshl_b32 s7, {S_S}, 15")
elif ROT == 3:
    a("s_mul_i32 s7, s2, 0x9e3779b1"); a("s_lshr_b32 s7, s7, 27"); a("s_lshl_b32 s7, s7, 13")
a("s_add_u32 s40, s10, s38")
a("s_addc_u32 s41, s11, 0")
a("s_add_u32 s44, s12, s38")
a("s_addc_u32 s45, s13, 0")
sch = Sched()
NA, NB = 0, 64
def slot(kind, i):
    if kind == "K":
        if i < 16: return 4 * i
        if i < 24: return 32 + 4 * (i - 16)
        return 64 + 4 * (i - 24)
    else:
        if i < 8: return 64 + 4 * i
        if i < 16: return 4 * (i - 8)
        if i < 24: return 4 * (i - 16)
        return 32 + 4 * (i - 24)
order = [("K", i) for i in range(16)] + [("V", i) for i in range(16)] + [("K", i) for i in range(16, 32)] + [("V", i) for i in range(16, 32)]
def issue(n):
    k, i = order[n]
    D = DEPTH if n < N2 else DEPTH2
    if n >= D: sch.wait("%s%d" % order[n - D])
    d = slot(k, i)
    srd = KSRD if k == "K" else VSRD
    if ROT:
        a(f"s_add_u32 s67, s7, {i*8192}")
        a("s_and_b32 s67, s67, 0x3ffff")
        a(f"buffer_load_dwordx4 v[{d}:{d+3}], v124, {srd}, s67 offen nt")
    elif i == 0:
        a(f"buffer_load_dwordx4 v[{d}:{d+3}], v124, {srd}, 0 offen nt")
    else:
        a(f"s_mov_b32 s67, {i*8192}")
        a(f"buffer_load_dwordx4 v[{d}:{d+3}], v124, {srd}, s67 offen nt")
    sch.issue(f"{k}{i}")
def qk(i):
    sch.wait(f"K{i}")
    d = slot("K", i)
    for j in range(4 if not NOCOMP else 0):
        a(f"v_dot2c_f32_bf16 v{96 + i % 16}, v{d+j}, v{112+j}")
def pv(j):
    sch.wait(f"V{j}")
    d = slot("V", j)
    for t in range(4 if not NOCOMP else 0):
        a(f"v_dot2c_f32_bf16_dpp v{116+2*t}, v110, v{d+t} row_newbcast:{j % 16} {DPPF}")
        a(f"v_dot2c_f32_bf16_dpp v{117+2*t}, v111, v{d+t} row_newbcast:{j % 16} {DPPF}")
def butterfly():
    for i in range(8):
        a(f"v_add_f32_dpp v{96+i}, v{96+i}, v{96+i} row_ror:8 row_mask:0xf bank_mask:0x3")
        a(f"v_add_f32_dpp v{96+i}, v{104+i}, v{104+i} row_ror:8 row_mask:0xf bank_mask:0xc")
    for i in range(4):
        a(f"v_add_f32_dpp v{96+i}, v{96+i}, v{96+i} row_ror:12 row_mask:0xf bank_mask:0x5")
        a(f"v_add_f32_dpp v{96+i}, v{100+i}, v{100+i} row_ror:4 row_mask:0xf bank_mask:0xa")
    for i in range(4):
        a(f"v_add_f32_dpp v{96+i}, v{96+i}, v{96+i} quad_perm:[2,3,0,1] {DPPF}")
    a("v_cndmask_b32 v96, v96, v98, s[68:69]")
    a("v_cndmask_b32 v97, v97, v99, s[68:69]")
    a(f"v_add_f32_dpp v96, v96, v96 quad_perm:[1,0,3,2] {DPPF}")
    a(f"v_add_f32_dpp v97, v97, v97 quad_perm:[1,0,3,2] {DPPF}")
    a("v_cndmask_b32 v96, v96, v97, s[70:71]")
    a("v_mul_f32 v96, s78, v96")
    a("v_mov_b32 v97, v96")
    wave_reduce_to63("v_max_f32", 97)
C = {n: [] for n in range(64)}
def at(n, f): C[n].append(f)
def setup_scalars():
    ws_srd()
    a("s_mov_b32 s68, 0xcccccccc")
    a("s_mov_b32 s69, 0xcccccccc")
    a("s_mov_b32 s70, 0xaaaaaaaa")
    a("s_mov_b32 s71, 0xaaaaaaaa")
    a(f"s_mov_b32 s78, {f2u(SC):#x}")
    a(f"s_load_dword s6, s[32:33], {EPO}")
    a(f"v_and_b32 v121, 15, {VL}")
    a("v_lshlrev_b32 v121, 4, v121")
    for i in range(16): a(f"v_mov_b32 v{96+i}, 0")
at(DEPTH - 1, setup_scalars)
def qwait():
    if not NOQW: lds_wait_flag(L_FQ)
    a(f"ds_read_b128 v[112:115], v121 offset:{L_Q}")
    stamp(1)
    a("s_waitcnt lgkmcnt(0)")
at(QW, qwait)
qs = QW
for g in range(4):
    for i in range(4 * g, 4 * g + 4): at(qs + g, lambda i=i: qk(i))
def softmax0():
    butterfly()
    a("v_readlane_b32 s72, v97, 63")
    a("v_subrev_f32 v96, s72, v96")
    a("v_exp_f32 v96, v96")
    a("v_cvt_pk_bf16_f32 v110, v96, 0")
    a("v_cvt_pk_bf16_f32 v111, 0, v96")
    a("v_mov_b32 v97, v111")
    wave_reduce_to63("v_add_f32", 97)
    a("v_readlane_b32 s73, v97, 63")
    for j in range(8): a(f"v_mov_b32 v{116+j}, 0")
    make_tags()
    stamp(2)
s0 = qs + 4
at(s0, softmax0)
for j in range(8): at(s0 + 1 + j // 2, lambda j=j: pv(j))
p8 = s0 + 5
pvn = {}
for j in range(8):
    pvn[j] = max(p8 + j // 2, 24 + j + DEPTH)
    at(pvn[j], lambda j=j: pv(8 + j))
nz = pvn[7]
assert s0 + 4 < 40, "PV(V0..7) must finish before K24 issue"
assert nz < 48
def zeroS():
    for i in range(16): a(f"v_mov_b32 v{96+i}, 0")
at(nz, zeroS)
qkn = {}
prev = nz
cnt = 0
for j in range(16):
    n = max(nz, 32 + j + DEPTH)
    while qkn and sum(1 for v in qkn.values() if v == n) >= 3: n += 1
    if qkn: n = max(n, max(qkn.values()))
    while sum(1 for v in qkn.values() if v == n) >= 3: n += 1
    qkn[j] = n
    at(n, lambda j=j: qk(16 + j))
    assert j >= 8 or n < 56 + j, (j, n)
ns = qkn[15]
def softmax1():
    butterfly()
    a("v_readlane_b32 s74, v97, 63")
    a("v_mov_b32 v98, s72")
    a("v_max_f32 v98, s74, v98")
    a("v_sub_f32 v96, v96, v98")
    a("v_sub_f32 v99, s72, v98")
    a("v_exp_f32 v96, v96")
    a("v_exp_f32 v99, v99")
    a("v_readfirstlane_b32 s72, v98")
    a("v_cvt_pk_bf16_f32 v110, v96, 0")
    a("v_cvt_pk_bf16_f32 v111, 0, v96")
    for j in range(8): a(f"v_mul_f32 v{116+j}, v99, v{116+j}")
    a("s_mov_b64 exec, 1")
    a(f"s_lshl_b32 s38, {S_WAVE}, 2")
    a("v_mov_b32 v97, s38")
    a(f"ds_write_b32 v97, v98 offset:{L_M}")
    a("v_mov_b32 v98, 1")
    a(f"ds_add_u32 {VZ}, v98 offset:{L_MC}")
    a("s_mov_b64 exec, -1")
    a("v_mov_b32 v97, v111")
    wave_reduce_to63("v_add_f32", 97)
    a("v_mul_f32 v99, s73, v99")
    a("v_readlane_b32 s73, v97, 63")
    a("v_add_f32 v102, s73, v99")
    stamp(3)
at(ns, softmax1)
done = 16
for n in range(ns + 1, 64):
    k = 0
    while done < 32 and k < 2 and (48 + (done - 16) + DEPTH2) <= n:
        at(n, lambda j=done: pv(j)); done += 1; k += 1
for j in range(8): assert qs + j // 4 < 24 + j
for j in range(8): assert qs + (8 + j) // 4 < 32 + j
for j in range(8): assert pvn[j] < 48 + j
for n in range(64):
    issue(n)
    for f in C[n]: f()
lds_wait_flag(L_MC, "s_cmp_ge_u32", "8", sleep=1)
a(f"v_and_b32 v99, 7, {VL}")
a("v_lshlrev_b32 v99, 2, v99")
a(f"ds_read_b32 v100, v99 offset:{L_M}")
a(f"v_lshrrev_b32 v98, 4, {VL}")
a(f"v_and_b32 v103, 15, {VL}")
a("v_lshlrev_b32 v103, 5, v103")
a("v_lshl_add_u32 v103, v98, 3, v103")
a(f"s_mul_i32 s38, {S_WAVE}, {OPS}")
a("v_add_u32 v104, s38, v103")
a("s_waitcnt lgkmcnt(0)")
a(f"v_max_f32_dpp v100, v100, v100 quad_perm:[1,0,3,2] {DPPF}")
a(f"v_max_f32_dpp v100, v100, v100 quad_perm:[2,3,0,1] {DPPF}")
a(f"v_max_f32_dpp v100, v100, v100 row_half_mirror {DPPF}")
a("v_sub_f32 v101, s72, v100")
a("v_exp_f32 v101, v101")
a(f"s_lshl_b32 s38, {S_WAVE}, 2")
a("v_mov_b32 v99, s38")
a("v_mul_f32 v102, v102, v101")
a("s_mov_b64 exec, 1")
a(f"ds_write_b32 v99, v102 offset:{L_L}")
if MLE:
    a("v_mov_b32 v99, 1")
    a(f"ds_add_u32 {VZ}, v99 offset:{L_LC}")
a("s_mov_b64 exec, -1")
for j in range(done, 32): pv(j)
stamp(4)
rowreduce8(list(range(116, 124)), 116, 117)
a("v_mul_f32 v116, v101, v116")
a("v_mul_f32 v117, v101, v117")
if OADD:
    a(f"ds_add_f32 v103, v116 offset:{L_OA}")
    a(f"ds_add_f32 v103, v117 offset:{L_OA+4}")
else:
    a(f"ds_write_b64 v104, v[116:117] offset:{L_OP}")
a.label("L_barA")
if not OADD:
    a(f"v_and_b32 v106, 7, {VL}")
    a(f"v_mul_u32_u24 v106, {OPS}, v106")
    a(f"v_bfe_u32 v107, {VL}, 3, 2")
    a("v_lshl_add_u32 v106, v107, 3, v106")
    a(f"s_lshl_b32 s38, {S_WAVE}, 5")
    a("v_add_u32 v106, s38, v106")
    a(f"s_lshl_b32 s38, {S_WAVE}, 4")
    a("v_lshl_add_u32 v107, v107, 2, s38")
    a("s_mov_b32 s38, 0x01010101")
    a("s_mov_b32 s39, 0")
a("s_waitcnt lgkmcnt(0)")
stamp(5)
a("s_barrier")
if not OADD:
    a(f"ds_read_b64 v[108:109], v106 offset:{L_OP}")
    a("s_waitcnt lgkmcnt(0)")
    for m in ("quad_perm:[1,0,3,2]", "quad_perm:[2,3,0,1]", "row_half_mirror"):
        a(f"v_add_f32_dpp v108, v108, v108 {m} {DPPF}")
        a(f"v_add_f32_dpp v109, v109, v109 {m} {DPPF}")
    a("v_cvt_pk_bf16_f32 v108, v108, v109")
    a("s_mov_b64 exec, s[38:39]")
    a(f"ds_write_b32 v107, v108 offset:{L_OPK}")
    a("s_mov_b64 exec, -1")
    a("s_waitcnt lgkmcnt(0)")
    a("s_barrier")
a(f"s_cmp_ge_u32 {S_WAVE}, 8")
a("s_cbranch_scc1 L_yphase")
if not MLE:
    a(f"s_cmp_lg_u32 {S_WAVE}, 0")
    a("s_cbranch_scc1 L_pubdone")
    a(f"v_and_b32 v99, 7, {VL}")
    a("v_lshlrev_b32 v99, 2, v99")
    a(f"ds_read_b32 v1, v99 offset:{L_L}")
    a("v_mov_b32 v2, s4")
    a("v_mov_b32 v3, s5")
    a("v_mov_b32 v0, v100")
    a("s_waitcnt lgkmcnt(0)")
    for m in ("quad_perm:[1,0,3,2]", "quad_perm:[2,3,0,1]", "row_half_mirror"):
        a(f"v_add_f32_dpp v1, v1, v1 {m} {DPPF}")
    a(f"s_lshl_b32 s38, {S_P}, 4")
    a(f"s_add_u32 s38, s38, {MLB}")
    a("s_mov_b64 exec, 1")
    a(f"buffer_store_dwordx4 v[0:3], {VZ}, {WSRD}, s38 offen sc1")
    a("s_mov_b64 exec, -1")
a("s_branch L_pubdone")
a.label("L_yphase")
if OADD:
    for q in range(4): a(f"ds_read_b128 v[{100+4*q}:{103+4*q}], v93 offset:{L_OA+16*q}")
    for q in range(4):
        a(f"s_waitcnt lgkmcnt({3-q})")
        a(f"v_cvt_pk_bf16_f32 v{72+2*q}, v{100+4*q}, v{101+4*q}")
        a(f"v_cvt_pk_bf16_f32 v{73+2*q}, v{102+4*q}, v{103+4*q}")
else:
    a(f"ds_read_b128 v[72:75], v105 offset:{L_OPK}")
    a(f"ds_read_b128 v[76:79], v105 offset:{L_OPK+16}")
    a("s_waitcnt lgkmcnt(0)")
PMAP = {}
spare = 64
for k in range(8):
    A_, B_ = 8 * k, 8 * k + 4
    PMAP[k] = (spare, B_)
    spare = A_
for k in range(8):
    lo, hi = PMAP[k]
    for j in range(4):
        a(f"v_dot2c_f32_bf16 v{80+2*j}, v{72+k}, v{lo+j}")
        a(f"v_dot2c_f32_bf16 v{81+2*j}, v{72+k}, v{hi+j}")
rowreduce8(list(range(80, 88)), 88, 89)
a(f"v_add_f32_dpp v88, v88, v88 row_ror:8 {DPPF}")
a(f"v_add_f32_dpp v89, v89, v89 row_ror:8 {DPPF}")
a(f"buffer_store_dwordx4 v[88:91], v92, {WSRD}, s79 offen sc1")
stamp(6)
a.label("L_pubdone")
a("s_cmp_ge_u32 s2, 0" if NORED else "s_cmp_ge_u32 s2, 32")
a("s_cbranch_scc1 L_fin")
a(f"s_lshl_b32 s38, {S_WAVE}, 6")
a(f"v_add_u32 v99, s38, {VL}")
a("v_lshlrev_b32 v98, 5, v99")
a("v_lshrrev_b32 v97, 2, v99")
a("v_lshlrev_b32 v97, 4, v97")
a("s_lshl_b32 s38, s2, 14")
a(f"s_add_u32 s38, s38, {YBB}")
a("s_add_u32 s52, s32, s38")
a("s_addc_u32 s53, s33, 0")
a(f"s_mov_b32 s54, {86*128}")
a("s_mov_b32 s55, 0x20000")
a("s_lshl_b32 s38, s2, 15")
a(f"s_add_u32 s38, s38, {YMB}")
a(f"s_mov_b32 s39, {MLB}")
a(f"ds_read_b64 v[24:25], {VZ} offset:{L_G}")
a("s_mov_b32 s79, 0x158")
a("v_cmp_gt_u32 s[72:73], s79, v99")
a(f"s_mov_b32 s75, {TMO_MEM}")
a.label("L_mlpoll")
a(f"buffer_load_dwordx4 v[8:11], v97, {WSRD}, s39 offen sc1")
a("s_waitcnt vmcnt(0)")
tag_bad([8], 20, 21)
a("s_cbranch_vccz L_mlok")
timeout_check()
a("s_sleep 2")
a("s_branch L_mlpoll")
a.label("L_mlok")
a.label("L_rpoll")
a(f"buffer_load_dwordx4 v[0:3], v98, {WSRD}, s38 offen sc1")
a(f"buffer_load_dwordx4 v[4:7], v98, {WSRD}, s38 offen offset:16 sc1")
a(f"buffer_load_dwordx4 v[12:15], v98, {TSRD}, 0 offen sc1")
a(f"buffer_load_dwordx4 v[16:19], v98, {TSRD}, 0 offen offset:16 sc1")
a("v_mov_b32 v26, v8")
a(f"v_max_f32_dpp v26, v26, v26 row_ror:4 {DPPF}")
a(f"v_max_f32_dpp v26, v26, v26 row_ror:8 {DPPF}")
a("v_mov_b32 v27, v26")
a("v_permlane16_swap_b32 v26, v27")
a("v_max_f32 v26, v26, v27")
a("v_sub_f32 v26, v8, v26")
a("v_exp_f32 v26, v26")
a("v_mul_f32 v28, v26, v9")
a(f"v_add_f32_dpp v28, v28, v28 row_ror:4 {DPPF}")
a(f"v_add_f32_dpp v28, v28, v28 row_ror:8 {DPPF}")
a("v_mov_b32 v27, v28")
a("v_permlane16_swap_b32 v28, v27")
a("v_add_f32 v28, v28, v27")
a("v_rcp_f32 v28, v28")
a("s_waitcnt lgkmcnt(0)")
a("v_mul_f32 v26, v26, v24")
a("v_mul_f32 v26, v26, v28")
a("s_waitcnt vmcnt(0)")
tag_bad([12, 16], 20, 21)
a("s_and_b64 s[76:77], vcc, s[72:73]")
tag_bad([0, 4], 20, 21)
a("s_or_b64 s[76:77], s[76:77], vcc")
a("s_cmp_eq_u64 s[76:77], 0")
a("s_cbranch_scc1 L_rok")
timeout_check()
a("s_branch L_rpoll")
a.label("L_rok")
stamp(7)
a("v_mul_f32 v12, v25, v12")
a("v_mul_f32 v13, v25, v13")
a("v_mul_f32 v16, v25, v16")
a("v_mul_f32 v17, v25, v17")
a("v_fma_f32 v2, v26, v4, v16")
a("v_fma_f32 v3, v26, v5, v17")
a("v_fma_f32 v0, v26, v0, v12")
a("v_fma_f32 v1, v26, v1, v13")
red16([0, 1, 2, 3])
a(f"v_and_b32 v8, 3, {VL}")
a("v_lshlrev_b32 v8, 4, v8")
a(f"v_lshrrev_b32 v9, 4, {VL}")
a("v_lshl_add_u32 v8, v9, 2, v8")
a(f"s_lshl_b32 s38, {S_WAVE}, 6")
a("v_add_u32 v9, s38, v8")
a("s_mov_b32 s38, 0x000f000f")
a("s_mov_b32 s39, 0x000f000f")
a("s_mov_b64 exec, s[38:39]")
a(f"ds_write_b32 v9, v0 offset:{L_RED}")
a("s_mov_b64 exec, -1")
a("s_waitcnt lgkmcnt(0)")
a("s_barrier")
a(f"s_cmp_lg_u32 {S_WAVE}, 0")
a("s_cbranch_scc1 L_fin")
a(f"v_lshlrev_b32 v9, 4, {VL}")
a(f"ds_read_b128 v[0:3], v9 offset:{L_RED}")
a("v_lshrrev_b32 v8, 1, v8")
a("s_lshl_b32 s79, s2, 5")
a("s_mov_b32 s52, s28")
a("s_mov_b32 s53, s29")
a("s_mov_b32 s54, 1024")
a("s_mov_b32 s55, 0x20000")
a("v_mov_b32 v4, s4")
a("s_waitcnt lgkmcnt(0)")
red16([0, 1, 2, 3])
a("v_cvt_pk_bf16_f32 v0, v0, 0")
a("s_mov_b64 exec, s[38:39]")
a(f"buffer_store_short v0, v8, {TSRD}, s79 offen" + ["", " sc1", " sc0 sc1", " nt"][OUTSC])
a("s_cmp_lg_u32 s2, 0")
a("s_cbranch_scc1 L_fin")
a("s_mov_b64 exec, 1")
a(f"s_mov_b32 s38, {EPO}")
a(f"buffer_store_dword v4, {VZ}, {WSRD}, s38 offen sc1")
a.label("L_fin")
a("s_mov_b64 exec, -1")
if DIAG:
    a("s_memrealtime s[96:97]")
    a("s_waitcnt lgkmcnt(0)")
    for k in range(11): a(f"v_mov_b32 v{k}, s{80+2*k}")
    a("s_getreg_b32 s38, hwreg(HW_REG_XCC_ID)")
    a("v_mov_b32 v11, s38")
    a("s_lshl_b32 s38, s2, 4")
    a(f"s_add_u32 s38, s38, {S_WAVE}")
    a("s_lshl_b32 s38, s38, 6")
    a(f"s_add_u32 s38, s38, {DIAGO}")
    a("s_mov_b64 exec, 1")
    a(f"buffer_store_dwordx4 v[0:3], {VZ}, {WSRD}, s38 offen")
    a(f"buffer_store_dwordx4 v[4:7], {VZ}, {WSRD}, s38 offen offset:16")
    a(f"buffer_store_dwordx4 v[8:11], {VZ}, {WSRD}, s38 offen offset:32")
if DBG:
    a("s_cmp_ge_u32 s2, 8")
    a("s_cbranch_scc1 L_end")
    a(f"s_cmp_lg_u32 {S_WAVE}, 0")
    a("s_cbranch_scc1 L_end")
    a("s_memrealtime s[92:93]")
    a("s_waitcnt lgkmcnt(0)")
    a("v_mov_b32 v0, s90")
    a("v_mov_b32 v1, s92")
    a("s_mov_b32 s52, s30")
    a("s_mov_b32 s53, s31")
    a("s_mov_b32 s54, 256")
    a("s_mov_b32 s55, 0x20000")
    a("s_lshl_b32 s38, s2, 3")
    a("s_mov_b64 exec, 1")
    a(f"buffer_store_dwordx2 v[0:1], {VZ}, {TSRD}, s38 offen")
a.label("L_end")
a("s_endpgm")

a.label("L_svc")
ws_srd()
if NOSVC:
    a("s_mov_b32 s79, 0x7fffffff")
    a("v_mov_b32 v104, 0")
    a("v_mov_b32 v105, 0")
    a("s_branch L_barA")
a(f"s_load_dword s6, s[32:33], {EPO}")
a(f"s_cmp_eq_u32 {S_WAVE}, 9")
a("s_cbranch_scc1 L_b1")
a(f"s_cmp_eq_u32 {S_WAVE}, 10")
a("s_cbranch_scc1 L_b2")
a(f"s_cmp_eq_u32 {S_WAVE}, 11")
a("s_cbranch_scc1 L_gate")
a(f"s_cmp_lg_u32 {S_WAVE}, 8")
a("s_cbranch_scc1 L_wo")
a(f"s_lshl_b32 s38, {S_S}, 19")
a(f"s_lshl_b32 s39, {S_H}, 8")
a("s_add_u32 s38, s38, s39")
a("s_add_u32 s52, s14, s38")
a("s_addc_u32 s53, s15, 0")
a("s_sub_u32 s54, 0x400000, s38")
a("s_mov_b32 s55, 0x20000")
a(f"v_lshrrev_b32 v122, 4, {VL}")
a(f"v_and_b32 v121, 15, {VL}")
a("v_lshlrev_b32 v120, 17, v122")
a("v_lshl_add_u32 v120, v121, 4, v120")
a("v_lshlrev_b32 v119, 5, v122")
a(f"s_lshl_b32 s38, {S_S}, 7")
a("v_add_u32 v119, s38, v119")
a("global_load_dwordx4 v[64:67], v119, s[8:9]")
a("global_load_dwordx4 v[68:71], v119, s[8:9] offset:16")
for i in range(16 if not NOWQ else 0):
    a(f"buffer_load_dwordx4 v[{4*i}:{4*i+3}], v120, {TSRD}, 0 offen nt")
    if i < 15: a("v_add_u32 v120, 0x2000, v120")
for j in range(8): a(f"v_mov_b32 v{104+j}, 0")
a("s_waitcnt vmcnt(16)")
for k in range(8):
    a(f"v_and_b32 v{72+4*k}, 0xffff, v{64+k}")
    a(f"v_lshlrev_b32 v{73+4*k}, 16, v{64+k}")
    a(f"v_lshrrev_b32 v{74+4*k}, 16, v{64+k}")
    a(f"v_and_b32 v{75+4*k}, 0xffff0000, v{64+k}")
for i in range(16):
    a(f"s_waitcnt vmcnt({15 - i})")
    for j in range(4):
        a(f"v_dot2c_f32_bf16 v{104+2*j}, v{72+2*i}, v{4*i+j}")
        a(f"v_dot2c_f32_bf16 v{105+2*j}, v{73+2*i}, v{4*i+j}")
rowreduce8(list(range(104, 112)), 104, 105)
a("s_waitcnt lgkmcnt(0)")
make_tags()
a("v_mov_b32 v106, s4")
a("v_mov_b32 v107, s5")
a("v_lshlrev_b32 v119, 6, v121")
a("v_lshl_add_u32 v119, v122, 4, v119")
a(f"s_lshl_b32 s79, {S_P}, 10")
a(f"buffer_store_dwordx4 v[104:107], v119, {WSRD}, s79 offen sc1")
stamp(9)
if QACK: a("s_waitcnt vmcnt(0)")
a(f"v_lshlrev_b32 v119, 4, {VL}")
a(f"s_lshl_b32 s79, {S_H}, 13")
a("s_add_u32 s38, s79, 4096")
a(f"s_mov_b32 s75, {TMO_MEM}")
a.label("L_qpoll")
if NOQP: a("s_branch L_qok")
for i in range(8):
    so = "s79" if i < 4 else "s38"
    a(f"buffer_load_dwordx4 v[{4*i}:{4*i+3}], v119, {WSRD}, {so} offen offset:{1024*(i%4)} sc1")
a("s_waitcnt vmcnt(0)")
tag_bad([4*i for i in range(8)], 32, 33)
a("s_cbranch_vccz L_qok")
timeout_check()
a("s_branch L_qpoll")
a.label("L_qok")
for j in range(2):
    a(f"v_add_f32 v{j}, v{j}, v{4+j}")
    a(f"v_add_f32 v{8+j}, v{8+j}, v{12+j}")
    a(f"v_add_f32 v{16+j}, v{16+j}, v{20+j}")
    a(f"v_add_f32 v{24+j}, v{24+j}, v{28+j}")
for j in range(2):
    a(f"v_add_f32 v{j}, v{j}, v{8+j}")
    a(f"v_add_f32 v{16+j}, v{16+j}, v{24+j}")
for j in range(2): a(f"v_add_f32 v{j}, v{j}, v{16+j}")
a("v_cvt_pk_bf16_f32 v0, v0, v1")
a(f"v_lshlrev_b32 v119, 2, {VL}")
a(f"ds_write_b32 v119, v0 offset:{L_Q}")
a("s_waitcnt lgkmcnt(0)")
lds_set_flag(L_FQ)
stamp(10)
a("s_branch L_wo2")

a.label("L_b1")
if NOB1: a("s_branch L_wo")
a("s_cmp_ge_u32 s2, 172")
a("s_cbranch_scc1 L_wo")
a("s_and_b32 s38, s2, 3")
a(f"s_mul_i32 s39, s38, {64*5504}")
a("s_lshr_b32 s79, s2, 2")
a("s_lshl_b32 s74, s79, 7")
a("s_add_u32 s39, s39, s74")
a("s_add_u32 s52, s20, s39")
a("s_addc_u32 s53, s21, 0")
a(f"s_sub_u32 s54, {512*2752}, s39")
a("s_mov_b32 s55, 0x20000")
a("s_add_u32 s48, s22, s39")
a("s_addc_u32 s49, s23, 0")
a("s_mov_b32 s50, s54")
a("s_mov_b32 s51, 0x20000")
a(f"v_lshrrev_b32 v122, 3, {VL}")
a(f"v_and_b32 v121, 7, {VL}")
a(f"v_mul_u32_u24 v120, {8*5504}, v122")
a("v_lshl_add_u32 v120, v121, 4, v120")
a("v_lshlrev_b32 v119, 5, v122")
a("s_lshl_b32 s38, s38, 8")
a("v_add_u32 v119, s38, v119")
a("global_load_dwordx4 v[64:67], v119, s[8:9]")
a("global_load_dwordx4 v[68:71], v119, s[8:9] offset:16")
a("s_lshl_b32 s74, s79, 6")
a("v_lshl_add_u32 v118, v121, 3, s74")
a("s_movk_i32 s74, 1375")
a("v_cmp_lt_u32 vcc, s74, v118")
a("v_cndmask_b32 v118, 0, 16, vcc")
nl = 0
for i in range(8):
    for srd, base in ((TSRD, 0), (WOSRD, 32)):
        if nl >= BD: a(f"s_waitcnt vmcnt({BD-1})")
        a(f"buffer_load_dwordx4 v[{base+4*i}:{base+4*i+3}], v120, {srd}, 0 offen nt"); nl += 1
    if i < 7: a("v_add_u32 v120, 5504, v120")
for j in range(16): a(f"v_mov_b32 v{96+j}, 0")
a("s_waitcnt vmcnt(0)")
for i in range(8):
    a(f"v_lshrrev_b32 v117, v118, v{64+i}")
    a(f"v_and_b32 v{72+2*i}, 0xffff, v117")
    a(f"v_lshlrev_b32 v{73+2*i}, 16, v117")
for i in range(8):
    for j in range(4):
        a(f"v_dot2c_f32_bf16 v{96+2*j}, v{72+2*i}, v{4*i+j}")
        a(f"v_dot2c_f32_bf16 v{97+2*j}, v{73+2*i}, v{4*i+j}")
        a(f"v_dot2c_f32_bf16 v{104+2*j}, v{72+2*i}, v{32+4*i+j}")
        a(f"v_dot2c_f32_bf16 v{105+2*j}, v{73+2*i}, v{32+4*i+j}")
for b in (96, 104):
    for j in range(4): a(f"v_permlane32_swap_b32 v{b+j}, v{b+4+j}")
for b in (96, 104):
    for j in range(4): a(f"v_add_f32 v{b+j}, v{b+j}, v{b+4+j}")
for b in (96, 104):
    for j in range(2): a(f"v_permlane16_swap_b32 v{b+j}, v{b+2+j}")
for b in (96, 104):
    for j in range(2): a(f"v_add_f32 v{b+j}, v{b+j}, v{b+2+j}")
for b in (96, 104):
    a(f"v_add_f32_dpp v{b}, v{b}, v{b} row_ror:8 row_mask:0xf bank_mask:0x3")
    a(f"v_add_f32_dpp v{b}, v{b+1}, v{b+1} row_ror:8 row_mask:0xf bank_mask:0xc")
a("s_waitcnt lgkmcnt(0)")
make_tags()
a("v_mov_b32 v97, v104")
a("v_mov_b32 v98, s4")
a("v_mov_b32 v99, s5")
a(f"v_bfe_u32 v100, {VL}, 5, 1")
a("v_lshlrev_b32 v100, 2, v100")
a(f"v_bfe_u32 v101, {VL}, 4, 1")
a("v_lshl_add_u32 v100, v101, 1, v100")
a(f"v_bfe_u32 v101, {VL}, 3, 1")
a("v_add_u32 v100, v100, v101")
a("v_lshl_add_u32 v100, v121, 3, v100")
a("v_lshlrev_b32 v100, 4, v100")
a("s_lshl_b32 s79, s2, 10")
a(f"s_add_u32 s79, s79, {BMB}")
a(f"buffer_store_dwordx4 v[96:99], v100, {WSRD}, s79 offen sc1")
stamp(9)
a("s_branch L_wo")

a.label("L_b2")
if NOB2: a("s_branch L_wo")
a("s_cmp_lt_u32 s2, 170")
a("s_cbranch_scc1 L_wo")
a("s_sub_u32 s79, s2, 170")
a("s_lshl_b32 s38, s79, 14")
a("s_add_u32 s52, s24, s38")
a("s_addc_u32 s53, s25, 0")
a("s_mov_b32 s54, 16384")
a("s_mov_b32 s55, 0x20000")
a(f"v_lshlrev_b32 v102, 4, {VL}")
for i in range(16):
    if i >= BD: a(f"s_waitcnt vmcnt({BD-1})")
    a(f"s_mov_b32 s67, {i*1024}")
    a(f"buffer_load_dwordx4 v[{4*i}:{4*i+3}], v102, {TSRD}, s67 offen nt")
a(f"v_and_b32 v114, 15, {VL}")
a("s_lshl_b32 s38, s79, 4")
a("v_add_u32 v114, s38, v114")
a("v_add_u32 v115, 1376, v114")
a(f"v_lshrrev_b32 v103, 4, {VL}")
a("v_lshlrev_b32 v103, 10, v103")
for r, d in ((114, 116), (115, 117)):
    a(f"v_lshrrev_b32 v{d}, 6, v{r}")
    a(f"v_lshlrev_b32 v{d}, 12, v{d}")
    a(f"v_and_b32 v{r}, 63, v{r}")
    a(f"v_lshl_add_u32 v{d}, v{r}, 4, v{d}")
    a(f"v_add_u32 v{d}, v{d}, v103")
lds_wait_flag(L_FQ, sleep=8)
a(f"s_mov_b32 s38, {BMB}")
make_tags()
a(f"s_mov_b32 s75, {TMO_MEM}")
a.label("L_bpoll")
if NOB1: a("s_branch L_bok")
a(f"buffer_load_dwordx4 v[104:107], v116, {WSRD}, s38 offen sc1")
a(f"buffer_load_dwordx4 v[108:111], v117, {WSRD}, s38 offen sc1")
a("s_waitcnt vmcnt(0)")
tag_bad([104, 108], 100, 101)
a("s_cbranch_vccz L_bok")
timeout_check()
a("s_sleep 8")
a("s_branch L_bpoll")
a.label("L_bok")
a("v_add_f32 v112, v104, v108")
a("v_add_f32 v113, v105, v109")
for r in (112, 113):
    a(f"v_mov_b32 v100, v{r}")
    a(f"v_permlane16_swap_b32 v{r}, v100")
    a(f"v_add_f32 v{r}, v{r}, v100")
    a(f"v_mov_b32 v100, v{r}")
    a(f"v_permlane32_swap_b32 v{r}, v100")
    a(f"v_add_f32 v{r}, v{r}, v100")
rb16(112, 112)
rb16(113, 113)
a("v_mul_f32 v114, v112, v113")
a("v_cvt_pk_bf16_f32 v112, v114, 0")
a("v_cvt_pk_bf16_f32 v113, 0, v114")
for j in range(8): a(f"v_mov_b32 v{96+j}, 0")
for i in range(16):
    for j in range(4):
        a(f"v_dot2c_f32_bf16_dpp v{96+2*j}, v112, v{4*i+j} row_newbcast:{i} {DPPF}")
        a(f"v_dot2c_f32_bf16_dpp v{97+2*j}, v113, v{4*i+j} row_newbcast:{i} {DPPF}")
a(f"v_lshlrev_b32 v114, 5, {VL}")
a(f"ds_write_b128 v114, v[96:99] offset:{L_YT}")
a(f"ds_write_b128 v114, v[100:103] offset:{L_YT+16}")
a(f"v_lshlrev_b32 v114, 3, {VL}")
a("s_waitcnt lgkmcnt(0)")
for k in range(4):
    a(f"ds_read_b64 v[{96+4*k}:{97+4*k}], v114 offset:{L_YT + 512*k}")
for k in range(4):
    a(f"v_mov_b32 v{98+4*k}, s4")
    a(f"v_mov_b32 v{99+4*k}, s5")
a(f"v_lshrrev_b32 v114, 3, {VL}")
a("v_lshlrev_b32 v114, 14, v114")
a(f"v_and_b32 v115, 7, {VL}")
a("v_lshl_add_u32 v114, v115, 4, v114")
a("s_lshl_b32 s38, s79, 7")
a(f"s_add_u32 s38, s38, {YBB}")
a("s_waitcnt lgkmcnt(0)")
for k in range(4):
    a(f"buffer_store_dwordx4 v[{96+4*k}:{99+4*k}], v114, {WSRD}, s38 offen sc1")
    if k < 3: a("s_add_u32 s38, s38, 0x20000")
stamp(9)
a("s_branch L_wo")

a.label("L_gate")
a("s_cmp_ge_u32 s2, 32")
a("s_cbranch_scc1 L_wo")
a(f"v_lshlrev_b32 v102, 4, {VL}")
a("global_load_dwordx4 v[8:11], v102, s[8:9]")
a("global_load_dwordx4 v[12:15], v102, s[26:27]")
a("v_mov_b32 v16, 0")
a("s_mov_b32 s38, 0x3f803f80")
a("s_waitcnt vmcnt(0)")
for j in range(4):
    a(f"v_lshlrev_b32 v17, 16, v{8+j}")
    a(f"v_lshlrev_b32 v18, 16, v{12+j}")
    a(f"v_and_b32 v19, 0xffff0000, v{8+j}")
    a(f"v_and_b32 v20, 0xffff0000, v{12+j}")
    a("v_mul_f32 v17, v17, v18")
    a("v_mul_f32 v19, v19, v20")
    a("v_cvt_pk_bf16_f32 v17, v17, v19")
    a("v_dot2c_f32_bf16 v16, s38, v17")
wave_reduce_to63("v_add_f32", 16)
a("v_readlane_b32 s38, v16, 63")
a("v_mov_b32 v16, s38")
rb16(16, 16)
a(f"v_mul_f32 v16, {f2u(-1.4426950408889634):#x}, v16")
a("v_exp_f32 v16, v16")
a("v_add_f32 v16, 1.0, v16")
a("v_rcp_f32 v16, v16")
rb16(16, 16)
a("v_sub_f32 v17, 1.0, v16")
rb16(17, 17)
a("s_mov_b64 exec, 1")
a(f"ds_write_b64 {VZ}, v[16:17] offset:{L_G}")
a("s_mov_b64 exec, -1")
a.label("L_wo")
lds_wait_flag(L_FQ, sleep=8)
a.label("L_wo2")
a(f"s_lshl_b32 s38, {S_H}, 17")
a("s_add_u32 s48, s16, s38")
a("s_addc_u32 s49, s17, 0")
a("s_mov_b32 s50, 0x20000")
a("s_mov_b32 s51, 0x20000")
a("s_mov_b32 s76, 0x05040100")
a("s_mov_b32 s77, 0x07060302")
a(f"v_lshrrev_b32 v122, 3, {VL}")
a(f"v_and_b32 v121, 7, {VL}")
a("v_lshlrev_b32 v120, 14, v122")
a("v_lshl_add_u32 v120, v121, 4, v120")
a(f"s_sub_u32 s74, {S_WAVE}, 8")
a("s_lshl_b32 s38, s74, 7")
a("v_add_u32 v120, s38, v120")
sw = Sched()
for i in range(16):
    if i >= WOD and not NOWO: sw.wait(f"W{i-WOD}")
    a(f"s_mov_b32 s67, {i*1024}")
    if not NOWO: a(f"buffer_load_dwordx4 v[{4*i}:{4*i+3}], v120, {WOSRD}, s67 offen nt")
    sw.issue(f"W{i}")
a("v_lshlrev_b32 v105, 5, v122")
a("v_lshlrev_b32 v93, 6, v122")
a(f"v_bfe_u32 v100, {VL}, 5, 1")
a("v_lshlrev_b32 v100, 1, v100")
a(f"v_bfe_u32 v101, {VL}, 4, 1")
a("v_add_u32 v100, v100, v101")
a("v_lshl_add_u32 v100, v121, 2, v100")
a("v_lshrrev_b32 v101, 3, v100")
a("v_lshlrev_b32 v101, 15, v101")
a("v_and_b32 v100, 7, v100")
a("v_lshl_add_u32 v92, v100, 4, v101")
a(f"v_bfe_u32 v101, {VL}, 3, 1")
a("v_lshl_or_b32 v92, v101, 31, v92")
a("s_lshl_b32 s38, s74, 17")
a(f"s_lshl_b32 s79, {S_P}, 7")
a("s_add_u32 s79, s79, s38")
a(f"s_add_u32 s79, s79, {YMB}")
a("s_waitcnt lgkmcnt(0)")
make_tags()
a("v_mov_b32 v90, s4")
a("v_mov_b32 v91, s5")
for k in range(8):
    sw.wait(f"W{2*k+1}")
    lo, hi = PMAP[k]
    A_, B_ = 8 * k, 8 * k + 4
    for j in range(4): a(f"v_perm_b32 v{lo+j}, v{B_+j}, v{A_+j}, s76")
    for j in range(4): a(f"v_perm_b32 v{hi+j}, v{B_+j}, v{A_+j}, s77")
for j in range(80, 88): a(f"v_mov_b32 v{j}, 0")
stamp(4)
if MLE:
    a(f"s_cmp_lg_u32 {S_WAVE}, 12")
    a("s_cbranch_scc1 L_barA")
    lds_wait_flag(L_LC, "s_cmp_ge_u32", "8", sleep=2)
    a(f"v_and_b32 v99, 7, {VL}")
    a("v_lshlrev_b32 v99, 2, v99")
    a(f"ds_read_b32 v96, v99 offset:{L_M}")
    a(f"ds_read_b32 v97, v99 offset:{L_L}")
    a("v_mov_b32 v98, s4")
    a("v_mov_b32 v99, s5")
    a("s_waitcnt lgkmcnt(0)")
    for m in ("quad_perm:[1,0,3,2]", "quad_perm:[2,3,0,1]", "row_half_mirror"):
        a(f"v_max_f32_dpp v96, v96, v96 {m} {DPPF}")
        a(f"v_add_f32_dpp v97, v97, v97 {m} {DPPF}")
    a(f"s_lshl_b32 s38, {S_P}, 4")
    a(f"s_add_u32 s38, s38, {MLB}")
    a("s_mov_b64 exec, 1")
    a(f"buffer_store_dwordx4 v[96:99], {VZ}, {WSRD}, s38 offen sc1")
    a("s_mov_b64 exec, -1")
a("s_branch L_barA")

src = header(256, 1024, LDS_SIZE) + kstart() + a.text() + kdesc(vgpr=128, sgpr=102 if (DIAG or DBG) else 80)
open(OUT, "w").write(src)
print("lines", len(a.lines), "lds", LDS_SIZE)
```

```python
import sys, struct
from emit import Asm
from hdr import *

DIAG = "-diag" in sys.argv
OUT = sys.argv[1]
def opt(name, default):
    for x in sys.argv:
        if x.startswith(f"-{name}="): return int(x.split("=")[1])
    return default
DEPTH = opt("depth", 3)
WOD = opt("wod", 2)
DEPTH2 = opt("depth2", 8)
N2 = opt("n2", 48)
DEPTH0 = opt("depth0", DEPTH)
N1 = opt("n1", 0)
BD = opt("bd", 4)
NORED = "-nored" in sys.argv
DBG = "-dbg" in sys.argv
NOCOMP = "-nocomp" in sys.argv
NOQW = "-noqw" in sys.argv
NOSVC = "-nosvc" in sys.argv
NOQP = "-noqp" in sys.argv
NOB1 = "-nob1" in sys.argv
NOB2 = "-nob2" in sys.argv
NOWO = "-nowo" in sys.argv
NOWQ = "-nowq" in sys.argv
QACK = "-noqack" not in sys.argv
QW = opt("qw", 23)
MAP = opt("map", 0)
ROT = opt("rot", 0)
OADD = "-oadd" in sys.argv
OUTSC = opt("outsc", 0)
TOUCH = "-touch" in sys.argv
MLE = "-nomle" not in sys.argv
def f2u(x): return struct.unpack("<I", struct.pack("<f", x))[0]

QMB, BMB, QM2, MLB, EPO, YBB, YMB, DIAGO = 0x0, 0x40000, 0x6C000, 0x70000, 0x7F000, 0x80000, 0x100000, 0x200000
WS_SIZE = 0x300000
L_FQ, L_MC, L_LC = 8, 12, 16
L_OA = 0x800
L_M, L_L, L_Q, L_OPK, L_G = 0x40, 0x80, 0x100, 0x200, 0x340
L_OP, OPS = 0x400, 544
L_RED = 0x400 + 8 * 544
L_YT = L_RED + 1024
LDS_SIZE = L_YT + 2048
SC = (128 ** -0.5) * 1.4426950408889634
TMO_LDS = 1 << 20
TMO_MEM = 1 << 16

a = Asm()
DPPF = "row_mask:0xf bank_mask:0xf"
S_WAVE, S_H, S_S, S_P = "s34", "s35", "s36", "s37"
KSRD, VSRD, WOSRD, TSRD, WSRD = "s[40:43]", "s[44:47]", "s[48:51]", "s[52:55]", "s[60:63]"
VL, VZ, VT = "v125", "v127", "v126"

def stamp(idx):
    if DIAG: a(f"s_memrealtime s[{80+2*idx}:{81+2*idx}]")
def timeout_check(lbl_abort="L_end"):
    a("s_sub_u32 s75, s75, 1")
    a("s_cmp_eq_u32 s75, 0")
    a(f"s_cbranch_scc1 {lbl_abort}")
_lc = [0]
def newlabel(p):
    _lc[0] += 1
    return f"L_{p}{_lc[0]}"
def lds_wait_flag(off, cmp_op="s_cmp_lg_u32", val="0", sleep=2):
    l0, l1 = newlabel("lw"), newlabel("lwd")
    a(f"s_mov_b32 s75, {TMO_LDS}")
    a.label(l0)
    a(f"ds_read_b32 {VT}, {VZ} offset:{off}")
    a("s_waitcnt lgkmcnt(0)")
    a(f"v_readfirstlane_b32 s38, {VT}")
    a(f"{cmp_op} s38, {val}")
    a(f"s_cbranch_scc1 {l1}")
    timeout_check()
    a(f"s_sleep {sleep}")
    a(f"s_branch {l0}")
    a.label(l1)
def lds_set_flag(off):
    a("s_mov_b64 exec, 1")
    a(f"v_mov_b32 {VT}, 1")
    a(f"ds_write_b32 {VZ}, {VT} offset:{off}")
    a("s_mov_b64 exec, -1")
def rowreduce8(acc, o0, o1):
    for j in range(4): a(f"v_permlane32_swap_b32 v{acc[j]}, v{acc[j+4]}")
    for j in range(4): a(f"v_add_f32 v{acc[j]}, v{acc[j]}, v{acc[j+4]}")
    a(f"v_permlane16_swap_b32 v{acc[0]}, v{acc[2]}")
    a(f"v_permlane16_swap_b32 v{acc[1]}, v{acc[3]}")
    a(f"v_add_f32 v{o0}, v{acc[0]}, v{acc[2]}")
    a(f"v_add_f32 v{o1}, v{acc[1]}, v{acc[3]}")
def row_allreduce(op, reg):
    for n in (8, 4, 2, 1):
        a(f"{op}_dpp v{reg}, v{reg}, v{reg} row_ror:{n} {DPPF}")
def wave_reduce_to63(op, reg):
    row_allreduce(op, reg)
    a(f"{op}_dpp v{reg}, v{reg}, v{reg} row_bcast:15 row_mask:0xa bank_mask:0xf")
    a(f"{op}_dpp v{reg}, v{reg}, v{reg} row_bcast:31 row_mask:0xc bank_mask:0xf")
def rb16(dst, src):
    a(f"v_cvt_pk_bf16_f32 v{dst}, 0, v{src}")
def red16(regs):
    for n in (4, 8):
        for r in regs: a(f"v_add_f32_dpp v{r}, v{r}, v{r} row_ror:{n} {DPPF}")
    a(f"v_permlane32_swap_b32 v{regs[0]}, v{regs[2]}")
    a(f"v_permlane32_swap_b32 v{regs[1]}, v{regs[3]}")
    a(f"v_add_f32 v{regs[0]}, v{regs[0]}, v{regs[2]}")
    a(f"v_add_f32 v{regs[1]}, v{regs[1]}, v{regs[3]}")
    a(f"v_permlane16_swap_b32 v{regs[0]}, v{regs[1]}")
    a(f"v_add_f32 v{regs[0]}, v{regs[0]}, v{regs[1]}")
def tag_bad(grans, acc, t):
    first = True
    for g in grans:
        if first:
            a(f"v_xor_b32 v{acc}, s4, v{g+2}")
            a(f"v_xor_b32 v{t}, s5, v{g+3}")
            a(f"v_or_b32 v{acc}, v{acc}, v{t}")
            first = False
        else:
            a(f"v_xor_b32 v{t}, s4, v{g+2}")
            a(f"v_or_b32 v{acc}, v{acc}, v{t}")
            a(f"v_xor_b32 v{t}, s5, v{g+3}")
            a(f"v_or_b32 v{acc}, v{acc}, v{t}")
    a(f"v_cmp_ne_u32 vcc, 0, v{acc}")
def make_tags():
    a("s_add_u32 s4, s6, 1")
    a("s_mul_i32 s5, s4, 0x9e3779b1")
    a("s_xor_b32 s5, s5, 0x5bd1e995")
class Sched:
    def __init__(self): self.issued = []; self.landed = -1
    def issue(self, name): self.issued.append(name)
    def wait(self, name):
        idx = self.issued.index(name)
        if idx > self.landed:
            a(f"s_waitcnt vmcnt({len(self.issued) - 1 - idx})")
            self.landed = idx
def ws_srd():
    a("s_mov_b32 s60, s32")
    a("s_mov_b32 s61, s33")
    a(f"s_mov_b32 s62, {WS_SIZE}")
    a("s_mov_b32 s63, 0x20000")

if DBG: a("s_memrealtime s[90:91]")
a("s_load_dwordx16 s[8:23], s[0:1], 0")
a("s_load_dwordx8 s[24:31], s[0:1], 64")
a("s_load_dwordx2 s[32:33], s[0:1], 96")
a("s_cmp_ge_u32 s2, 256")
a("s_cbranch_scc1 L_end")
a(f"v_and_b32 {VL}, 63, v0")
a(f"v_lshrrev_b32 {VT}, 6, v0")
a(f"v_mov_b32 {VZ}, 0")
a(f"v_readfirstlane_b32 {S_WAVE}, {VT}")
a("v_lshlrev_b32 v124, 4, v0")
if MAP in (0, 1, 3):
    a(f"s_and_b32 {S_H}, s2, 7")
    if MAP == 1: a(f"s_xor_b32 {S_H}, {S_H}, 4")
    if MAP == 3: a(f"s_xor_b32 {S_H}, {S_H}, 2")
    a(f"s_lshl_b32 {S_H}, {S_H}, 2")
    a(f"s_lshr_b32 {S_S}, s2, 3")
    a(f"s_and_b32 {S_S}, {S_S}, 3")
    a(f"s_or_b32 {S_H}, {S_H}, {S_S}")
    a(f"s_lshr_b32 {S_S}, s2, 5")
elif MAP == 2:
    a(f"s_lshr_b32 {S_H}, s2, 3")
    a(f"s_and_b32 {S_S}, s2, 7")
elif MAP == 4:
    a(f"s_and_b32 {S_H}, s2, 7")
    a(f"s_lshr_b32 {S_S}, s2, 3")
    a(f"s_and_b32 {S_S}, {S_S}, 3")
    a(f"s_lshl_b32 {S_S}, {S_S}, 3")
    a(f"s_or_b32 {S_H}, {S_H}, {S_S}")
    a(f"s_lshr_b32 {S_S}, s2, 5")
a(f"s_lshl_b32 {S_P}, {S_H}, 3")
a(f"s_or_b32 {S_P}, {S_P}, {S_S}")
a(f"s_cmp_lg_u32 {S_WAVE}, 8")
a("s_cbranch_scc1 L_noinit")
a(f"v_lshlrev_b32 {VT}, 2, {VL}")
a(f"ds_write_b32 {VT}, {VZ}")
if OADD:
    a(f"ds_write_b32 {VT}, {VZ} offset:{L_OA}")
    a(f"ds_write_b32 {VT}, {VZ} offset:{L_OA+256}")
a("s_waitcnt lgkmcnt(0)")
a.label("L_noinit")
a("s_barrier")
a(f"s_lshl_b32 s38, {S_P}, 18")
a("s_mov_b32 s42, 0x40000")
a("s_mov_b32 s43, 0x20000")
a("s_mov_b32 s46, 0x40000")
a("s_mov_b32 s47, 0x20000")
a(f"s_cmp_ge_u32 {S_WAVE}, 8")
a("s_waitcnt lgkmcnt(0)")
if DIAG: a("s_memrealtime s[80:81]")
a("s_cbranch_scc1 L_svc")
if ROT == 1:
    a("s_mul_i32 s7, s2, 5"); a("s_and_b32 s7, s7, 31"); a("s_lshl_b32 s7, s7, 13")
elif ROT == 2:
    a(f"s_lshl_b32 s7, {S_S}, 15")
elif ROT == 3:
    a("s_mul_i32 s7, s2, 0x9e3779b1"); a("s_lshr_b32 s7, s7, 27"); a("s_lshl_b32 s7, s7, 13")
a("s_add_u32 s40, s10, s38")
a("s_addc_u32 s41, s11, 0")
a("s_add_u32 s44, s12, s38")
a("s_addc_u32 s45, s13, 0")
sch = Sched()
NA, NB = 0, 64
def slot(kind, i):
    if kind == "K":
        if i < 16: return 4 * i
        if i < 24: return 32 + 4 * (i - 16)
        return 64 + 4 * (i - 24)
    else:
        if i < 8: return 64 + 4 * i
        if i < 16: return 4 * (i - 8)
        if i < 24: return 4 * (i - 16)
        return 32 + 4 * (i - 24)
order = [("K", i) for i in range(16)] + [("V", i) for i in range(16)] + [("K", i) for i in range(16, 32)] + [("V", i) for i in range(16, 32)]
def issue(n):
    k, i = order[n]
    D = DEPTH0 if n < N1 else (DEPTH if n < N2 else DEPTH2)
    if n >= D: sch.wait("%s%d" % order[n - D])
    d = slot(k, i)
    srd = KSRD if k == "K" else VSRD
    if ROT:
        a(f"s_add_u32 s67, s7, {i*8192}")
        a("s_and_b32 s67, s67, 0x3ffff")
        a(f"buffer_load_dwordx4 v[{d}:{d+3}], v124, {srd}, s67 offen nt")
    elif i == 0:
        a(f"buffer_load_dwordx4 v[{d}:{d+3}], v124, {srd}, 0 offen nt")
    else:
        a(f"s_mov_b32 s67, {i*8192}")
        a(f"buffer_load_dwordx4 v[{d}:{d+3}], v124, {srd}, s67 offen nt")
    sch.issue(f"{k}{i}")
def qk(i):
    sch.wait(f"K{i}")
    d = slot("K", i)
    for j in range(4 if not NOCOMP else 0):
        a(f"v_dot2c_f32_bf16 v{96 + i % 16}, v{d+j}, v{112+j}")
def pv(j):
    sch.wait(f"V{j}")
    d = slot("V", j)
    for t in range(4 if not NOCOMP else 0):
        a(f"v_dot2c_f32_bf16_dpp v{116+2*t}, v110, v{d+t} row_newbcast:{j % 16} {DPPF}")
        a(f"v_dot2c_f32_bf16_dpp v{117+2*t}, v111, v{d+t} row_newbcast:{j % 16} {DPPF}")
def butterfly():
    for i in range(8):
        a(f"v_add_f32_dpp v{96+i}, v{96+i}, v{96+i} row_ror:8 row_mask:0xf bank_mask:0x3")
        a(f"v_add_f32_dpp v{96+i}, v{104+i}, v{104+i} row_ror:8 row_mask:0xf bank_mask:0xc")
    for i in range(4):
        a(f"v_add_f32_dpp v{96+i}, v{96+i}, v{96+i} row_ror:12 row_mask:0xf bank_mask:0x5")
        a(f"v_add_f32_dpp v{96+i}, v{100+i}, v{100+i} row_ror:4 row_mask:0xf bank_mask:0xa")
    for i in range(4):
        a(f"v_add_f32_dpp v{96+i}, v{96+i}, v{96+i} quad_perm:[2,3,0,1] {DPPF}")
    a("v_cndmask_b32 v96, v96, v98, s[68:69]")
    a("v_cndmask_b32 v97, v97, v99, s[68:69]")
    a(f"v_add_f32_dpp v96, v96, v96 quad_perm:[1,0,3,2] {DPPF}")
    a(f"v_add_f32_dpp v97, v97, v97 quad_perm:[1,0,3,2] {DPPF}")
    a("v_cndmask_b32 v96, v96, v97, s[70:71]")
    a("v_mul_f32 v96, s78, v96")
    a("v_mov_b32 v97, v96")
    wave_reduce_to63("v_max_f32", 97)
C = {n: [] for n in range(64)}
def at(n, f): C[n].append(f)
def setup_scalars():
    ws_srd()
    a("s_mov_b32 s68, 0xcccccccc")
    a("s_mov_b32 s69, 0xcccccccc")
    a("s_mov_b32 s70, 0xaaaaaaaa")
    a("s_mov_b32 s71, 0xaaaaaaaa")
    a(f"s_mov_b32 s78, {f2u(SC):#x}")
    a(f"s_load_dword s6, s[32:33], {EPO}")
    a(f"v_and_b32 v121, 15, {VL}")
    a("v_lshlrev_b32 v121, 4, v121")
    for i in range(16): a(f"v_mov_b32 v{96+i}, 0")
at(min(DEPTH, DEPTH0) - 1, setup_scalars)
def qwait():
    if not NOQW: lds_wait_flag(L_FQ)
    a(f"ds_read_b128 v[112:115], v121 offset:{L_Q}")
    stamp(1)
    a("s_waitcnt lgkmcnt(0)")
at(QW, qwait)
qs = QW
for g in range(4):
    for i in range(4 * g, 4 * g + 4): at(qs + g, lambda i=i: qk(i))
def softmax0():
    butterfly()
    a("v_readlane_b32 s72, v97, 63")
    a("v_subrev_f32 v96, s72, v96")
    a("v_exp_f32 v96, v96")
    a("v_cvt_pk_bf16_f32 v110, v96, 0")
    a("v_cvt_pk_bf16_f32 v111, 0, v96")
    a("v_mov_b32 v97, v111")
    wave_reduce_to63("v_add_f32", 97)
    a("v_readlane_b32 s73, v97, 63")
    for j in range(8): a(f"v_mov_b32 v{116+j}, 0")
    make_tags()
    stamp(2)
s0 = qs + 4
at(s0, softmax0)
for j in range(8): at(s0 + 1 + j // 2, lambda j=j: pv(j))
p8 = s0 + 5
pvn = {}
for j in range(8):
    pvn[j] = max(p8 + j // 2, 24 + j + DEPTH)
    at(pvn[j], lambda j=j: pv(8 + j))
nz = pvn[7]
assert s0 + 4 < 40, "PV(V0..7) must finish before K24 issue"
assert nz < 48
def zeroS():
    for i in range(16): a(f"v_mov_b32 v{96+i}, 0")
at(nz, zeroS)
qkn = {}
prev = nz
cnt = 0
for j in range(16):
    n = max(nz, 32 + j + DEPTH)
    while qkn and sum(1 for v in qkn.values() if v == n) >= 3: n += 1
    if qkn: n = max(n, max(qkn.values()))
    while sum(1 for v in qkn.values() if v == n) >= 3: n += 1
    qkn[j] = n
    at(n, lambda j=j: qk(16 + j))
    assert j >= 8 or n < 56 + j, (j, n)
ns = qkn[15]
def softmax1():
    butterfly()
    a("v_readlane_b32 s74, v97, 63")
    a("v_mov_b32 v98, s72")
    a("v_max_f32 v98, s74, v98")
    a("v_sub_f32 v96, v96, v98")
    a("v_sub_f32 v99, s72, v98")
    a("v_exp_f32 v96, v96")
    a("v_exp_f32 v99, v99")
    a("v_readfirstlane_b32 s72, v98")
    a("v_cvt_pk_bf16_f32 v110, v96, 0")
    a("v_cvt_pk_bf16_f32 v111, 0, v96")
    for j in range(8): a(f"v_mul_f32 v{116+j}, v99, v{116+j}")
    a("s_mov_b64 exec, 1")
    a(f"s_lshl_b32 s38, {S_WAVE}, 2")
    a("v_mov_b32 v97, s38")
    a(f"ds_write_b32 v97, v98 offset:{L_M}")
    a("v_mov_b32 v98, 1")
    a(f"ds_add_u32 {VZ}, v98 offset:{L_MC}")
    a("s_mov_b64 exec, -1")
    a("v_mov_b32 v97, v111")
    wave_reduce_to63("v_add_f32", 97)
    a("v_mul_f32 v99, s73, v99")
    a("v_readlane_b32 s73, v97, 63")
    a("v_add_f32 v102, s73, v99")
    stamp(3)
at(ns, softmax1)
done = 16
for n in range(ns + 1, 64):
    k = 0
    while done < 32 and k < 2 and (48 + (done - 16) + DEPTH2) <= n:
        at(n, lambda j=done: pv(j)); done += 1; k += 1
for j in range(8): assert qs + j // 4 < 24 + j
for j in range(8): assert qs + (8 + j) // 4 < 32 + j
for j in range(8): assert pvn[j] < 48 + j
for n in range(64):
    issue(n)
    for f in C[n]: f()
lds_wait_flag(L_MC, "s_cmp_ge_u32", "8", sleep=1)
a(f"v_and_b32 v99, 7, {VL}")
a("v_lshlrev_b32 v99, 2, v99")
a(f"ds_read_b32 v100, v99 offset:{L_M}")
a(f"v_lshrrev_b32 v98, 4, {VL}")
a(f"v_and_b32 v103, 15, {VL}")
a("v_lshlrev_b32 v103, 5, v103")
a("v_lshl_add_u32 v103, v98, 3, v103")
a(f"s_mul_i32 s38, {S_WAVE}, {OPS}")
a("v_add_u32 v104, s38, v103")
a("s_waitcnt lgkmcnt(0)")
a(f"v_max_f32_dpp v100, v100, v100 quad_perm:[1,0,3,2] {DPPF}")
a(f"v_max_f32_dpp v100, v100, v100 quad_perm:[2,3,0,1] {DPPF}")
a(f"v_max_f32_dpp v100, v100, v100 row_half_mirror {DPPF}")
a("v_sub_f32 v101, s72, v100")
a("v_exp_f32 v101, v101")
a(f"s_lshl_b32 s38, {S_WAVE}, 2")
a("v_mov_b32 v99, s38")
a("v_mul_f32 v102, v102, v101")
a("s_mov_b64 exec, 1")
a(f"ds_write_b32 v99, v102 offset:{L_L}")
if MLE:
    a("v_mov_b32 v99, 1")
    a(f"ds_add_u32 {VZ}, v99 offset:{L_LC}")
a("s_mov_b64 exec, -1")
for j in range(done, 32): pv(j)
stamp(4)
rowreduce8(list(range(116, 124)), 116, 117)
a("v_mul_f32 v116, v101, v116")
a("v_mul_f32 v117, v101, v117")
if OADD:
    a(f"ds_add_f32 v103, v116 offset:{L_OA}")
    a(f"ds_add_f32 v103, v117 offset:{L_OA+4}")
else:
    a(f"ds_write_b64 v104, v[116:117] offset:{L_OP}")
a.label("L_barA")
if not OADD:
    a(f"v_and_b32 v106, 7, {VL}")
    a(f"v_mul_u32_u24 v106, {OPS}, v106")
    a(f"v_bfe_u32 v107, {VL}, 3, 2")
    a("v_lshl_add_u32 v106, v107, 3, v106")
    a(f"s_lshl_b32 s38, {S_WAVE}, 5")
    a("v_add_u32 v106, s38, v106")
    a(f"s_lshl_b32 s38, {S_WAVE}, 4")
    a("v_lshl_add_u32 v107, v107, 2, s38")
    a("s_mov_b32 s38, 0x01010101")
    a("s_mov_b32 s39, 0")
a("s_waitcnt lgkmcnt(0)")
stamp(5)
a("s_barrier")
if not OADD:
    a(f"ds_read_b64 v[108:109], v106 offset:{L_OP}")
    a("s_waitcnt lgkmcnt(0)")
    for m in ("quad_perm:[1,0,3,2]", "quad_perm:[2,3,0,1]", "row_half_mirror"):
        a(f"v_add_f32_dpp v108, v108, v108 {m} {DPPF}")
        a(f"v_add_f32_dpp v109, v109, v109 {m} {DPPF}")
    a("v_cvt_pk_bf16_f32 v108, v108, v109")
    a("s_mov_b64 exec, s[38:39]")
    a(f"ds_write_b32 v107, v108 offset:{L_OPK}")
    a("s_mov_b64 exec, -1")
    a("s_waitcnt lgkmcnt(0)")
    a("s_barrier")
a(f"s_cmp_ge_u32 {S_WAVE}, 8")
a("s_cbranch_scc1 L_yphase")
if not MLE:
    a(f"s_cmp_lg_u32 {S_WAVE}, 0")
    a("s_cbranch_scc1 L_pubdone")
    a(f"v_and_b32 v99, 7, {VL}")
    a("v_lshlrev_b32 v99, 2, v99")
    a(f"ds_read_b32 v1, v99 offset:{L_L}")
    a("v_mov_b32 v2, s4")
    a("v_mov_b32 v3, s5")
    a("v_mov_b32 v0, v100")
    a("s_waitcnt lgkmcnt(0)")
    for m in ("quad_perm:[1,0,3,2]", "quad_perm:[2,3,0,1]", "row_half_mirror"):
        a(f"v_add_f32_dpp v1, v1, v1 {m} {DPPF}")
    a(f"s_lshl_b32 s38, {S_P}, 4")
    a(f"s_add_u32 s38, s38, {MLB}")
    a("s_mov_b64 exec, 1")
    a(f"buffer_store_dwordx4 v[0:3], {VZ}, {WSRD}, s38 offen sc1")
    a("s_mov_b64 exec, -1")
a("s_branch L_pubdone")
a.label("L_yphase")
if OADD:
    for q in range(4): a(f"ds_read_b128 v[{100+4*q}:{103+4*q}], v93 offset:{L_OA+16*q}")
    for q in range(4):
        a(f"s_waitcnt lgkmcnt({3-q})")
        a(f"v_cvt_pk_bf16_f32 v{72+2*q}, v{100+4*q}, v{101+4*q}")
        a(f"v_cvt_pk_bf16_f32 v{73+2*q}, v{102+4*q}, v{103+4*q}")
else:
    a(f"ds_read_b128 v[72:75], v105 offset:{L_OPK}")
    a(f"ds_read_b128 v[76:79], v105 offset:{L_OPK+16}")
    a("s_waitcnt lgkmcnt(0)")
PMAP = {}
spare = 64
for k in range(8):
    A_, B_ = 8 * k, 8 * k + 4
    PMAP[k] = (spare, B_)
    spare = A_
for k in range(8):
    lo, hi = PMAP[k]
    for j in range(4):
        a(f"v_dot2c_f32_bf16 v{80+2*j}, v{72+k}, v{lo+j}")
        a(f"v_dot2c_f32_bf16 v{81+2*j}, v{72+k}, v{hi+j}")
rowreduce8(list(range(80, 88)), 88, 89)
a(f"v_add_f32_dpp v88, v88, v88 row_ror:8 {DPPF}")
a(f"v_add_f32_dpp v89, v89, v89 row_ror:8 {DPPF}")
a(f"buffer_store_dwordx4 v[88:91], v92, {WSRD}, s79 offen sc1")
stamp(6)
a.label("L_pubdone")
a("s_cmp_ge_u32 s2, 0" if NORED else "s_cmp_ge_u32 s2, 32")
a("s_cbranch_scc1 L_fin")
a(f"s_lshl_b32 s38, {S_WAVE}, 6")
a(f"v_add_u32 v99, s38, {VL}")
a("v_lshlrev_b32 v98, 5, v99")
a("v_lshrrev_b32 v97, 2, v99")
a("v_lshlrev_b32 v97, 4, v97")
a("s_lshl_b32 s38, s2, 14")
a(f"s_add_u32 s38, s38, {YBB}")
a("s_add_u32 s52, s32, s38")
a("s_addc_u32 s53, s33, 0")
a(f"s_mov_b32 s54, {86*128}")
a("s_mov_b32 s55, 0x20000")
a("s_lshl_b32 s38, s2, 15")
a(f"s_add_u32 s38, s38, {YMB}")
a(f"s_mov_b32 s39, {MLB}")
a(f"ds_read_b64 v[24:25], {VZ} offset:{L_G}")
a("s_mov_b32 s79, 0x158")
a("v_cmp_gt_u32 s[72:73], s79, v99")
a(f"s_mov_b32 s75, {TMO_MEM}")
a.label("L_mlpoll")
a(f"buffer_load_dwordx4 v[8:11], v97, {WSRD}, s39 offen sc1")
a("s_waitcnt vmcnt(0)")
tag_bad([8], 20, 21)
a("s_cbranch_vccz L_mlok")
timeout_check()
a("s_sleep 2")
a("s_branch L_mlpoll")
a.label("L_mlok")
a.label("L_rpoll")
a(f"buffer_load_dwordx4 v[0:3], v98, {WSRD}, s38 offen sc1")
a(f"buffer_load_dwordx4 v[4:7], v98, {WSRD}, s38 offen offset:16 sc1")
a(f"buffer_load_dwordx4 v[12:15], v98, {TSRD}, 0 offen sc1")
a(f"buffer_load_dwordx4 v[16:19], v98, {TSRD}, 0 offen offset:16 sc1")
a("v_mov_b32 v26, v8")
a(f"v_max_f32_dpp v26, v26, v26 row_ror:4 {DPPF}")
a(f"v_max_f32_dpp v26, v26, v26 row_ror:8 {DPPF}")
a("v_mov_b32 v27, v26")
a("v_permlane16_swap_b32 v26, v27")
a("v_max_f32 v26, v26, v27")
a("v_sub_f32 v26, v8, v26")
a("v_exp_f32 v26, v26")
a("v_mul_f32 v28, v26, v9")
a(f"v_add_f32_dpp v28, v28, v28 row_ror:4 {DPPF}")
a(f"v_add_f32_dpp v28, v28, v28 row_ror:8 {DPPF}")
a("v_mov_b32 v27, v28")
a("v_permlane16_swap_b32 v28, v27")
a("v_add_f32 v28, v28, v27")
a("v_rcp_f32 v28, v28")
a("s_waitcnt lgkmcnt(0)")
a("v_mul_f32 v26, v26, v24")
a("v_mul_f32 v26, v26, v28")
a("s_waitcnt vmcnt(0)")
tag_bad([12, 16], 20, 21)
a("s_and_b64 s[76:77], vcc, s[72:73]")
tag_bad([0, 4], 20, 21)
a("s_or_b64 s[76:77], s[76:77], vcc")
a("s_cmp_eq_u64 s[76:77], 0")
a("s_cbranch_scc1 L_rok")
timeout_check()
a("s_branch L_rpoll")
a.label("L_rok")
stamp(7)
a("v_mul_f32 v12, v25, v12")
a("v_mul_f32 v13, v25, v13")
a("v_mul_f32 v16, v25, v16")
a("v_mul_f32 v17, v25, v17")
a("v_fma_f32 v2, v26, v4, v16")
a("v_fma_f32 v3, v26, v5, v17")
a("v_fma_f32 v0, v26, v0, v12")
a("v_fma_f32 v1, v26, v1, v13")
red16([0, 1, 2, 3])
a(f"v_and_b32 v8, 3, {VL}")
a("v_lshlrev_b32 v8, 4, v8")
a(f"v_lshrrev_b32 v9, 4, {VL}")
a("v_lshl_add_u32 v8, v9, 2, v8")
a(f"s_lshl_b32 s38, {S_WAVE}, 6")
a("v_add_u32 v9, s38, v8")
a("s_mov_b32 s38, 0x000f000f")
a("s_mov_b32 s39, 0x000f000f")
a("s_mov_b64 exec, s[38:39]")
a(f"ds_write_b32 v9, v0 offset:{L_RED}")
a("s_mov_b64 exec, -1")
a("s_waitcnt lgkmcnt(0)")
a("s_barrier")
a(f"s_cmp_lg_u32 {S_WAVE}, 0")
a("s_cbranch_scc1 L_fin")
a(f"v_lshlrev_b32 v9, 4, {VL}")
a(f"ds_read_b128 v[0:3], v9 offset:{L_RED}")
a("v_lshrrev_b32 v8, 1, v8")
a("s_lshl_b32 s79, s2, 5")
a("s_mov_b32 s52, s28")
a("s_mov_b32 s53, s29")
a("s_mov_b32 s54, 1024")
a("s_mov_b32 s55, 0x20000")
a("v_mov_b32 v4, s4")
a("s_waitcnt lgkmcnt(0)")
red16([0, 1, 2, 3])
a("v_cvt_pk_bf16_f32 v0, v0, 0")
a("s_mov_b64 exec, s[38:39]")
a(f"buffer_store_short v0, v8, {TSRD}, s79 offen" + ["", " sc1", " sc0 sc1", " nt"][OUTSC])
a("s_cmp_lg_u32 s2, 0")
a("s_cbranch_scc1 L_fin")
a("s_mov_b64 exec, 1")
a(f"s_mov_b32 s38, {EPO}")
a(f"buffer_store_dword v4, {VZ}, {WSRD}, s38 offen sc1")
a.label("L_fin")
a("s_mov_b64 exec, -1")
if DIAG:
    a("s_memrealtime s[96:97]")
    a("s_waitcnt lgkmcnt(0)")
    for k in range(11): a(f"v_mov_b32 v{k}, s{80+2*k}")
    a("s_getreg_b32 s38, hwreg(HW_REG_XCC_ID)")
    a("v_mov_b32 v11, s38")
    a("s_lshl_b32 s38, s2, 4")
    a(f"s_add_u32 s38, s38, {S_WAVE}")
    a("s_lshl_b32 s38, s38, 6")
    a(f"s_add_u32 s38, s38, {DIAGO}")
    a("s_mov_b64 exec, 1")
    a(f"buffer_store_dwordx4 v[0:3], {VZ}, {WSRD}, s38 offen")
    a(f"buffer_store_dwordx4 v[4:7], {VZ}, {WSRD}, s38 offen offset:16")
    a(f"buffer_store_dwordx4 v[8:11], {VZ}, {WSRD}, s38 offen offset:32")
if DBG:
    a("s_cmp_ge_u32 s2, 8")
    a("s_cbranch_scc1 L_end")
    a(f"s_cmp_lg_u32 {S_WAVE}, 0")
    a("s_cbranch_scc1 L_end")
    a("s_memrealtime s[92:93]")
    a("s_waitcnt lgkmcnt(0)")
    a("v_mov_b32 v0, s90")
    a("v_mov_b32 v1, s92")
    a("s_mov_b32 s52, s30")
    a("s_mov_b32 s53, s31")
    a("s_mov_b32 s54, 256")
    a("s_mov_b32 s55, 0x20000")
    a("s_lshl_b32 s38, s2, 3")
    a("s_mov_b64 exec, 1")
    a(f"buffer_store_dwordx2 v[0:1], {VZ}, {TSRD}, s38 offen")
a.label("L_end")
a("s_endpgm")

a.label("L_svc")
ws_srd()
if NOSVC:
    a("s_mov_b32 s79, 0x7fffffff")
    a("v_mov_b32 v104, 0")
    a("v_mov_b32 v105, 0")
    a("s_branch L_barA")
a(f"s_load_dword s6, s[32:33], {EPO}")
if TOUCH:
    a(f"s_cmp_lg_u32 {S_WAVE}, 15")
    a("s_cbranch_scc1 L_notouch")
    a(f"s_lshl_b32 s38, {S_P}, 18")
    a("s_add_u32 s44, s12, s38")
    a("s_addc_u32 s45, s13, 0")
    a(f"s_lshl_b32 s38, {S_H}, 17")
    a("s_add_u32 s48, s16, s38")
    a("s_addc_u32 s49, s17, 0")
    a("s_mov_b32 s50, 0x20000")
    a("s_mov_b32 s51, 0x20000")
    a("s_mov_b64 exec, 1")
    a(f"buffer_load_dword v0, {VZ}, {VSRD}, 0 offen nt")
    a(f"buffer_load_dword v1, {VZ}, {WOSRD}, 0 offen nt")
    a(f"s_mov_b32 s38, {YMB}")
    a(f"buffer_load_dword v2, {VZ}, {WSRD}, s38 offen sc1")
    a("s_mov_b32 s52, s28")
    a("s_mov_b32 s53, s29")
    a("s_mov_b32 s54, 1024")
    a("s_mov_b32 s55, 0x20000")
    a(f"buffer_load_dword v3, {VZ}, {TSRD}, 0 offen")
    a("s_mov_b64 exec, -1")
    a.label("L_notouch")
a(f"s_cmp_eq_u32 {S_WAVE}, 9")
a("s_cbranch_scc1 L_b1")
a(f"s_cmp_eq_u32 {S_WAVE}, 10")
a("s_cbranch_scc1 L_b2")
a(f"s_cmp_eq_u32 {S_WAVE}, 11")
a("s_cbranch_scc1 L_gate")
a(f"s_cmp_lg_u32 {S_WAVE}, 8")
a("s_cbranch_scc1 L_wo")
a(f"s_lshl_b32 s38, {S_S}, 19")
a(f"s_lshl_b32 s39, {S_H}, 8")
a("s_add_u32 s38, s38, s39")
a("s_add_u32 s52, s14, s38")
a("s_addc_u32 s53, s15, 0")
a("s_sub_u32 s54, 0x400000, s38")
a("s_mov_b32 s55, 0x20000")
a(f"v_lshrrev_b32 v122, 4, {VL}")
a(f"v_and_b32 v121, 15, {VL}")
a("v_lshlrev_b32 v120, 17, v122")
a("v_lshl_add_u32 v120, v121, 4, v120")
a("v_lshlrev_b32 v119, 5, v122")
a(f"s_lshl_b32 s38, {S_S}, 7")
a("v_add_u32 v119, s38, v119")
a("global_load_dwordx4 v[64:67], v119, s[8:9]")
a("global_load_dwordx4 v[68:71], v119, s[8:9] offset:16")
for i in range(16 if not NOWQ else 0):
    a(f"buffer_load_dwordx4 v[{4*i}:{4*i+3}], v120, {TSRD}, 0 offen nt")
    if i < 15: a("v_add_u32 v120, 0x2000, v120")
for j in range(8): a(f"v_mov_b32 v{104+j}, 0")
a("s_waitcnt vmcnt(16)")
for k in range(8):
    a(f"v_and_b32 v{72+4*k}, 0xffff, v{64+k}")
    a(f"v_lshlrev_b32 v{73+4*k}, 16, v{64+k}")
    a(f"v_lshrrev_b32 v{74+4*k}, 16, v{64+k}")
    a(f"v_and_b32 v{75+4*k}, 0xffff0000, v{64+k}")
for i in range(16):
    a(f"s_waitcnt vmcnt({15 - i})")
    for j in range(4):
        a(f"v_dot2c_f32_bf16 v{104+2*j}, v{72+2*i}, v{4*i+j}")
        a(f"v_dot2c_f32_bf16 v{105+2*j}, v{73+2*i}, v{4*i+j}")
rowreduce8(list(range(104, 112)), 104, 105)
a("s_waitcnt lgkmcnt(0)")
make_tags()
a("v_mov_b32 v106, s4")
a("v_mov_b32 v107, s5")
a("v_lshlrev_b32 v119, 6, v121")
a("v_lshl_add_u32 v119, v122, 4, v119")
a(f"s_lshl_b32 s79, {S_P}, 10")
a(f"buffer_store_dwordx4 v[104:107], v119, {WSRD}, s79 offen sc1")
stamp(9)
if QACK: a("s_waitcnt vmcnt(0)")
a(f"v_lshlrev_b32 v119, 4, {VL}")
a(f"s_lshl_b32 s79, {S_H}, 13")
a("s_add_u32 s38, s79, 4096")
a(f"s_mov_b32 s75, {TMO_MEM}")
a.label("L_qpoll")
if NOQP: a("s_branch L_qok")
for i in range(8):
    so = "s79" if i < 4 else "s38"
    a(f"buffer_load_dwordx4 v[{4*i}:{4*i+3}], v119, {WSRD}, {so} offen offset:{1024*(i%4)} sc1")
a("s_waitcnt vmcnt(0)")
tag_bad([4*i for i in range(8)], 32, 33)
a("s_cbranch_vccz L_qok")
timeout_check()
a("s_branch L_qpoll")
a.label("L_qok")
for j in range(2):
    a(f"v_add_f32 v{j}, v{j}, v{4+j}")
    a(f"v_add_f32 v{8+j}, v{8+j}, v{12+j}")
    a(f"v_add_f32 v{16+j}, v{16+j}, v{20+j}")
    a(f"v_add_f32 v{24+j}, v{24+j}, v{28+j}")
for j in range(2):
    a(f"v_add_f32 v{j}, v{j}, v{8+j}")
    a(f"v_add_f32 v{16+j}, v{16+j}, v{24+j}")
for j in range(2): a(f"v_add_f32 v{j}, v{j}, v{16+j}")
a("v_cvt_pk_bf16_f32 v0, v0, v1")
a(f"v_lshlrev_b32 v119, 2, {VL}")
a(f"ds_write_b32 v119, v0 offset:{L_Q}")
a("s_waitcnt lgkmcnt(0)")
lds_set_flag(L_FQ)
stamp(10)
a("s_branch L_wo2")

a.label("L_b1")
if NOB1: a("s_branch L_wo")
a("s_cmp_ge_u32 s2, 172")
a("s_cbranch_scc1 L_wo")
a("s_and_b32 s38, s2, 3")
a(f"s_mul_i32 s39, s38, {64*5504}")
a("s_lshr_b32 s79, s2, 2")
a("s_lshl_b32 s74, s79, 7")
a("s_add_u32 s39, s39, s74")
a("s_add_u32 s52, s20, s39")
a("s_addc_u32 s53, s21, 0")
a(f"s_sub_u32 s54, {512*2752}, s39")
a("s_mov_b32 s55, 0x20000")
a("s_add_u32 s48, s22, s39")
a("s_addc_u32 s49, s23, 0")
a("s_mov_b32 s50, s54")
a("s_mov_b32 s51, 0x20000")
a(f"v_lshrrev_b32 v122, 3, {VL}")
a(f"v_and_b32 v121, 7, {VL}")
a(f"v_mul_u32_u24 v120, {8*5504}, v122")
a("v_lshl_add_u32 v120, v121, 4, v120")
a("v_lshlrev_b32 v119, 5, v122")
a("s_lshl_b32 s38, s38, 8")
a("v_add_u32 v119, s38, v119")
a("global_load_dwordx4 v[64:67], v119, s[8:9]")
a("global_load_dwordx4 v[68:71], v119, s[8:9] offset:16")
a("s_lshl_b32 s74, s79, 6")
a("v_lshl_add_u32 v118, v121, 3, s74")
a("s_movk_i32 s74, 1375")
a("v_cmp_lt_u32 vcc, s74, v118")
a("v_cndmask_b32 v118, 0, 16, vcc")
nl = 0
for i in range(8):
    for srd, base in ((TSRD, 0), (WOSRD, 32)):
        if nl >= BD: a(f"s_waitcnt vmcnt({BD-1})")
        a(f"buffer_load_dwordx4 v[{base+4*i}:{base+4*i+3}], v120, {srd}, 0 offen nt"); nl += 1
    if i < 7: a("v_add_u32 v120, 5504, v120")
for j in range(16): a(f"v_mov_b32 v{96+j}, 0")
a("s_waitcnt vmcnt(0)")
for i in range(8):
    a(f"v_lshrrev_b32 v117, v118, v{64+i}")
    a(f"v_and_b32 v{72+2*i}, 0xffff, v117")
    a(f"v_lshlrev_b32 v{73+2*i}, 16, v117")
for i in range(8):
    for j in range(4):
        a(f"v_dot2c_f32_bf16 v{96+2*j}, v{72+2*i}, v{4*i+j}")
        a(f"v_dot2c_f32_bf16 v{97+2*j}, v{73+2*i}, v{4*i+j}")
        a(f"v_dot2c_f32_bf16 v{104+2*j}, v{72+2*i}, v{32+4*i+j}")
        a(f"v_dot2c_f32_bf16 v{105+2*j}, v{73+2*i}, v{32+4*i+j}")
for b in (96, 104):
    for j in range(4): a(f"v_permlane32_swap_b32 v{b+j}, v{b+4+j}")
for b in (96, 104):
    for j in range(4): a(f"v_add_f32 v{b+j}, v{b+j}, v{b+4+j}")
for b in (96, 104):
    for j in range(2): a(f"v_permlane16_swap_b32 v{b+j}, v{b+2+j}")
for b in (96, 104):
    for j in range(2): a(f"v_add_f32 v{b+j}, v{b+j}, v{b+2+j}")
for b in (96, 104):
    a(f"v_add_f32_dpp v{b}, v{b}, v{b} row_ror:8 row_mask:0xf bank_mask:0x3")
    a(f"v_add_f32_dpp v{b}, v{b+1}, v{b+1} row_ror:8 row_mask:0xf bank_mask:0xc")
a("s_waitcnt lgkmcnt(0)")
make_tags()
a("v_mov_b32 v97, v104")
a("v_mov_b32 v98, s4")
a("v_mov_b32 v99, s5")
a(f"v_bfe_u32 v100, {VL}, 5, 1")
a("v_lshlrev_b32 v100, 2, v100")
a(f"v_bfe_u32 v101, {VL}, 4, 1")
a("v_lshl_add_u32 v100, v101, 1, v100")
a(f"v_bfe_u32 v101, {VL}, 3, 1")
a("v_add_u32 v100, v100, v101")
a("v_lshl_add_u32 v100, v121, 3, v100")
a("v_lshlrev_b32 v100, 4, v100")
a("s_lshl_b32 s79, s2, 10")
a(f"s_add_u32 s79, s79, {BMB}")
a(f"buffer_store_dwordx4 v[96:99], v100, {WSRD}, s79 offen sc1")
stamp(9)
a("s_branch L_wo")

a.label("L_b2")
if NOB2: a("s_branch L_wo")
a("s_cmp_lt_u32 s2, 170")
a("s_cbranch_scc1 L_wo")
a("s_sub_u32 s79, s2, 170")
a("s_lshl_b32 s38, s79, 14")
a("s_add_u32 s52, s24, s38")
a("s_addc_u32 s53, s25, 0")
a("s_mov_b32 s54, 16384")
a("s_mov_b32 s55, 0x20000")
a(f"v_lshlrev_b32 v102, 4, {VL}")
for i in range(16):
    if i >= BD: a(f"s_waitcnt vmcnt({BD-1})")
    a(f"s_mov_b32 s67, {i*1024}")
    a(f"buffer_load_dwordx4 v[{4*i}:{4*i+3}], v102, {TSRD}, s67 offen nt")
a(f"v_and_b32 v114, 15, {VL}")
a("s_lshl_b32 s38, s79, 4")
a("v_add_u32 v114, s38, v114")
a("v_add_u32 v115, 1376, v114")
a(f"v_lshrrev_b32 v103, 4, {VL}")
a("v_lshlrev_b32 v103, 10, v103")
for r, d in ((114, 116), (115, 117)):
    a(f"v_lshrrev_b32 v{d}, 6, v{r}")
    a(f"v_lshlrev_b32 v{d}, 12, v{d}")
    a(f"v_and_b32 v{r}, 63, v{r}")
    a(f"v_lshl_add_u32 v{d}, v{r}, 4, v{d}")
    a(f"v_add_u32 v{d}, v{d}, v103")
lds_wait_flag(L_FQ, sleep=8)
a(f"s_mov_b32 s38, {BMB}")
make_tags()
a(f"s_mov_b32 s75, {TMO_MEM}")
a.label("L_bpoll")
if NOB1: a("s_branch L_bok")
a(f"buffer_load_dwordx4 v[104:107], v116, {WSRD}, s38 offen sc1")
a(f"buffer_load_dwordx4 v[108:111], v117, {WSRD}, s38 offen sc1")
a("s_waitcnt vmcnt(0)")
tag_bad([104, 108], 100, 101)
a("s_cbranch_vccz L_bok")
timeout_check()
a("s_sleep 8")
a("s_branch L_bpoll")
a.label("L_bok")
a("v_add_f32 v112, v104, v108")
a("v_add_f32 v113, v105, v109")
for r in (112, 113):
    a(f"v_mov_b32 v100, v{r}")
    a(f"v_permlane16_swap_b32 v{r}, v100")
    a(f"v_add_f32 v{r}, v{r}, v100")
    a(f"v_mov_b32 v100, v{r}")
    a(f"v_permlane32_swap_b32 v{r}, v100")
    a(f"v_add_f32 v{r}, v{r}, v100")
rb16(112, 112)
rb16(113, 113)
a("v_mul_f32 v114, v112, v113")
a("v_cvt_pk_bf16_f32 v112, v114, 0")
a("v_cvt_pk_bf16_f32 v113, 0, v114")
for j in range(8): a(f"v_mov_b32 v{96+j}, 0")
for i in range(16):
    for j in range(4):
        a(f"v_dot2c_f32_bf16_dpp v{96+2*j}, v112, v{4*i+j} row_newbcast:{i} {DPPF}")
        a(f"v_dot2c_f32_bf16_dpp v{97+2*j}, v113, v{4*i+j} row_newbcast:{i} {DPPF}")
a(f"v_lshlrev_b32 v114, 5, {VL}")
a(f"ds_write_b128 v114, v[96:99] offset:{L_YT}")
a(f"ds_write_b128 v114, v[100:103] offset:{L_YT+16}")
a(f"v_lshlrev_b32 v114, 3, {VL}")
a("s_waitcnt lgkmcnt(0)")
for k in range(4):
    a(f"ds_read_b64 v[{96+4*k}:{97+4*k}], v114 offset:{L_YT + 512*k}")
for k in range(4):
    a(f"v_mov_b32 v{98+4*k}, s4")
    a(f"v_mov_b32 v{99+4*k}, s5")
a(f"v_lshrrev_b32 v114, 3, {VL}")
a("v_lshlrev_b32 v114, 14, v114")
a(f"v_and_b32 v115, 7, {VL}")
a("v_lshl_add_u32 v114, v115, 4, v114")
a("s_lshl_b32 s38, s79, 7")
a(f"s_add_u32 s38, s38, {YBB}")
a("s_waitcnt lgkmcnt(0)")
for k in range(4):
    a(f"buffer_store_dwordx4 v[{96+4*k}:{99+4*k}], v114, {WSRD}, s38 offen sc1")
    if k < 3: a("s_add_u32 s38, s38, 0x20000")
stamp(9)
a("s_branch L_wo")

a.label("L_gate")
a("s_cmp_ge_u32 s2, 32")
a("s_cbranch_scc1 L_wo")
a(f"v_lshlrev_b32 v102, 4, {VL}")
a("global_load_dwordx4 v[8:11], v102, s[8:9]")
a("global_load_dwordx4 v[12:15], v102, s[26:27]")
a("v_mov_b32 v16, 0")
a("s_mov_b32 s38, 0x3f803f80")
a("s_waitcnt vmcnt(0)")
for j in range(4):
    a(f"v_lshlrev_b32 v17, 16, v{8+j}")
    a(f"v_lshlrev_b32 v18, 16, v{12+j}")
    a(f"v_and_b32 v19, 0xffff0000, v{8+j}")
    a(f"v_and_b32 v20, 0xffff0000, v{12+j}")
    a("v_mul_f32 v17, v17, v18")
    a("v_mul_f32 v19, v19, v20")
    a("v_cvt_pk_bf16_f32 v17, v17, v19")
    a("v_dot2c_f32_bf16 v16, s38, v17")
wave_reduce_to63("v_add_f32", 16)
a("v_readlane_b32 s38, v16, 63")
a("v_mov_b32 v16, s38")
rb16(16, 16)
a(f"v_mul_f32 v16, {f2u(-1.4426950408889634):#x}, v16")
a("v_exp_f32 v16, v16")
a("v_add_f32 v16, 1.0, v16")
a("v_rcp_f32 v16, v16")
rb16(16, 16)
a("v_sub_f32 v17, 1.0, v16")
rb16(17, 17)
a("s_mov_b64 exec, 1")
a(f"ds_write_b64 {VZ}, v[16:17] offset:{L_G}")
a("s_mov_b64 exec, -1")
a.label("L_wo")
lds_wait_flag(L_FQ, sleep=8)
a.label("L_wo2")
a(f"s_lshl_b32 s38, {S_H}, 17")
a("s_add_u32 s48, s16, s38")
a("s_addc_u32 s49, s17, 0")
a("s_mov_b32 s50, 0x20000")
a("s_mov_b32 s51, 0x20000")
a("s_mov_b32 s76, 0x05040100")
a("s_mov_b32 s77, 0x07060302")
a(f"v_lshrrev_b32 v122, 3, {VL}")
a(f"v_and_b32 v121, 7, {VL}")
a("v_lshlrev_b32 v120, 14, v122")
a("v_lshl_add_u32 v120, v121, 4, v120")
a(f"s_sub_u32 s74, {S_WAVE}, 8")
a("s_lshl_b32 s38, s74, 7")
a("v_add_u32 v120, s38, v120")
sw = Sched()
for i in range(16):
    if i >= WOD and not NOWO: sw.wait(f"W{i-WOD}")
    a(f"s_mov_b32 s67, {i*1024}")
    if not NOWO: a(f"buffer_load_dwordx4 v[{4*i}:{4*i+3}], v120, {WOSRD}, s67 offen nt")
    sw.issue(f"W{i}")
a("v_lshlrev_b32 v105, 5, v122")
a("v_lshlrev_b32 v93, 6, v122")
a(f"v_bfe_u32 v100, {VL}, 5, 1")
a("v_lshlrev_b32 v100, 1, v100")
a(f"v_bfe_u32 v101, {VL}, 4, 1")
a("v_add_u32 v100, v100, v101")
a("v_lshl_add_u32 v100, v121, 2, v100")
a("v_lshrrev_b32 v101, 3, v100")
a("v_lshlrev_b32 v101, 15, v101")
a("v_and_b32 v100, 7, v100")
a("v_lshl_add_u32 v92, v100, 4, v101")
a(f"v_bfe_u32 v101, {VL}, 3, 1")
a("v_lshl_or_b32 v92, v101, 31, v92")
a("s_lshl_b32 s38, s74, 17")
a(f"s_lshl_b32 s79, {S_P}, 7")
a("s_add_u32 s79, s79, s38")
a(f"s_add_u32 s79, s79, {YMB}")
a("s_waitcnt lgkmcnt(0)")
make_tags()
a("v_mov_b32 v90, s4")
a("v_mov_b32 v91, s5")
for k in range(8):
    sw.wait(f"W{2*k+1}")
    lo, hi = PMAP[k]
    A_, B_ = 8 * k, 8 * k + 4
    for j in range(4): a(f"v_perm_b32 v{lo+j}, v{B_+j}, v{A_+j}, s76")
    for j in range(4): a(f"v_perm_b32 v{hi+j}, v{B_+j}, v{A_+j}, s77")
for j in range(80, 88): a(f"v_mov_b32 v{j}, 0")
stamp(4)
if MLE:
    a(f"s_cmp_lg_u32 {S_WAVE}, 12")
    a("s_cbranch_scc1 L_barA")
    lds_wait_flag(L_LC, "s_cmp_ge_u32", "8", sleep=2)
    a(f"v_and_b32 v99, 7, {VL}")
    a("v_lshlrev_b32 v99, 2, v99")
    a(f"ds_read_b32 v96, v99 offset:{L_M}")
    a(f"ds_read_b32 v97, v99 offset:{L_L}")
    a("v_mov_b32 v98, s4")
    a("v_mov_b32 v99, s5")
    a("s_waitcnt lgkmcnt(0)")
    for m in ("quad_perm:[1,0,3,2]", "quad_perm:[2,3,0,1]", "row_half_mirror"):
        a(f"v_max_f32_dpp v96, v96, v96 {m} {DPPF}")
        a(f"v_add_f32_dpp v97, v97, v97 {m} {DPPF}")
    a(f"s_lshl_b32 s38, {S_P}, 4")
    a(f"s_add_u32 s38, s38, {MLB}")
    a("s_mov_b64 exec, 1")
    a(f"buffer_store_dwordx4 v[96:99], {VZ}, {WSRD}, s38 offen sc1")
    a("s_mov_b64 exec, -1")
a("s_branch L_barA")

src = header(256, 1024, LDS_SIZE) + kstart() + a.text() + kdesc(vgpr=128, sgpr=102 if (DIAG or DBG) else 80)
open(OUT, "w").write(src)
print("lines", len(a.lines), "lds", LDS_SIZE)
```

```python
import sys, struct
from emit import Asm
from hdr import *

DIAG = "-diag" in sys.argv
OUT = sys.argv[1]
def opt(name, default):
    for x in sys.argv:
        if x.startswith(f"-{name}="): return int(x.split("=")[1])
    return default
DEPTH = opt("depth", 3)
WOD = opt("wod", 2)
DEPTH2 = opt("depth2", 8)
N2 = opt("n2", 48)
DEPTH0 = opt("depth0", DEPTH)
N1 = opt("n1", 0)
BD = opt("bd", 4)
NORED = "-nored" in sys.argv
DBG = "-dbg" in sys.argv
NOCOMP = "-nocomp" in sys.argv
NOQW = "-noqw" in sys.argv
NOSVC = "-nosvc" in sys.argv
NOQP = "-noqp" in sys.argv
NOB1 = "-nob1" in sys.argv
NOB2 = "-nob2" in sys.argv
NOWO = "-nowo" in sys.argv
NOWQ = "-nowq" in sys.argv
QACK = "-noqack" not in sys.argv
QW = opt("qw", 23)
MAP = opt("map", 0)
ROT = opt("rot", 0)
OADD = "-oadd" in sys.argv
OUTSC = opt("outsc", 0)
TOUCH = "-touch" in sys.argv
MLE = "-nomle" not in sys.argv
def f2u(x): return struct.unpack("<I", struct.pack("<f", x))[0]

QMB, BMB, QM2, MLB, EPO, YBB, YMB, DIAGO = 0x0, 0x40000, 0x6C000, 0x70000, 0x7F000, 0x80000, 0x100000, 0x200000
WS_SIZE = 0x300000
L_FQ, L_MC, L_LC = 8, 12, 16
L_OA = 0x800
L_M, L_L, L_Q, L_OPK, L_G = 0x40, 0x80, 0x100, 0x200, 0x340
L_OP, OPS = 0x400, 544
L_RED = 0x400 + 8 * 544
L_YT = L_RED + 1024
LDS_SIZE = L_YT + 2048
SC = (128 ** -0.5) * 1.4426950408889634
TMO_LDS = 1 << 20
TMO_MEM = 1 << 16


DOC = """
; ---------------------------------------------------------------------------------------------
;   workgroup wg -> head h = (wg%8)*4 + (wg/8)%4, key split s = wg/32 (1024 keys each).
;   Cross-workgroup hand-offs: 16-byte granules {d0, d1, tag1, tag2} written/read with sc1; the tag
; ---------------------------------------------------------------------------------------------
"""
a = Asm()
DPPF = "row_mask:0xf bank_mask:0xf"
S_WAVE, S_H, S_S, S_P = "s34", "s35", "s36", "s37"
KSRD, VSRD, WOSRD, TSRD, WSRD = "s[40:43]", "s[44:47]", "s[48:51]", "s[52:55]", "s[60:63]"
VL, VZ, VT = "v125", "v127", "v126"

def stamp(idx):
    if DIAG: a(f"s_memrealtime s[{80+2*idx}:{81+2*idx}]")
def timeout_check(lbl_abort="L_end"):
    a("s_sub_u32 s75, s75, 1")
    a("s_cmp_eq_u32 s75, 0")
    a(f"s_cbranch_scc1 {lbl_abort}")
_lc = [0]
def newlabel(p):
    _lc[0] += 1
    return f"L_{p}{_lc[0]}"
def lds_wait_flag(off, cmp_op="s_cmp_lg_u32", val="0", sleep=2):
    l0, l1 = newlabel("lw"), newlabel("lwd")
    a(f"s_mov_b32 s75, {TMO_LDS}")
    a.label(l0)
    a(f"ds_read_b32 {VT}, {VZ} offset:{off}")
    a("s_waitcnt lgkmcnt(0)")
    a(f"v_readfirstlane_b32 s38, {VT}")
    a(f"{cmp_op} s38, {val}")
    a(f"s_cbranch_scc1 {l1}")
    timeout_check()
    a(f"s_sleep {sleep}")
    a(f"s_branch {l0}")
    a.label(l1)
def lds_set_flag(off):
    a("s_mov_b64 exec, 1")
    a(f"v_mov_b32 {VT}, 1")
    a(f"ds_write_b32 {VZ}, {VT} offset:{off}")
    a("s_mov_b64 exec, -1")
def rowreduce8(acc, o0, o1):
    for j in range(4): a(f"v_permlane32_swap_b32 v{acc[j]}, v{acc[j+4]}")
    for j in range(4): a(f"v_add_f32 v{acc[j]}, v{acc[j]}, v{acc[j+4]}")
    a(f"v_permlane16_swap_b32 v{acc[0]}, v{acc[2]}")
    a(f"v_permlane16_swap_b32 v{acc[1]}, v{acc[3]}")
    a(f"v_add_f32 v{o0}, v{acc[0]}, v{acc[2]}")
    a(f"v_add_f32 v{o1}, v{acc[1]}, v{acc[3]}")
def row_allreduce(op, reg):
    for n in (8, 4, 2, 1):
        a(f"{op}_dpp v{reg}, v{reg}, v{reg} row_ror:{n} {DPPF}")
def wave_reduce_to63(op, reg):
    row_allreduce(op, reg)
    a(f"{op}_dpp v{reg}, v{reg}, v{reg} row_bcast:15 row_mask:0xa bank_mask:0xf")
    a(f"{op}_dpp v{reg}, v{reg}, v{reg} row_bcast:31 row_mask:0xc bank_mask:0xf")
def rb16(dst, src):
    a(f"v_cvt_pk_bf16_f32 v{dst}, 0, v{src}")
def red16(regs):
    for n in (4, 8):
        for r in regs: a(f"v_add_f32_dpp v{r}, v{r}, v{r} row_ror:{n} {DPPF}")
    a(f"v_permlane32_swap_b32 v{regs[0]}, v{regs[2]}")
    a(f"v_permlane32_swap_b32 v{regs[1]}, v{regs[3]}")
    a(f"v_add_f32 v{regs[0]}, v{regs[0]}, v{regs[2]}")
    a(f"v_add_f32 v{regs[1]}, v{regs[1]}, v{regs[3]}")
    a(f"v_permlane16_swap_b32 v{regs[0]}, v{regs[1]}")
    a(f"v_add_f32 v{regs[0]}, v{regs[0]}, v{regs[1]}")
def tag_bad(grans, acc, t):
    first = True
    for g in grans:
        if first:
            a(f"v_xor_b32 v{acc}, s4, v{g+2}")
            a(f"v_xor_b32 v{t}, s5, v{g+3}")
            a(f"v_or_b32 v{acc}, v{acc}, v{t}")
            first = False
        else:
            a(f"v_xor_b32 v{t}, s4, v{g+2}")
            a(f"v_or_b32 v{acc}, v{acc}, v{t}")
            a(f"v_xor_b32 v{t}, s5, v{g+3}")
            a(f"v_or_b32 v{acc}, v{acc}, v{t}")
    a(f"v_cmp_ne_u32 vcc, 0, v{acc}")
def make_tags():
    a("s_add_u32 s4, s6, 1")
    a("s_mul_i32 s5, s4, 0x9e3779b1")
    a("s_xor_b32 s5, s5, 0x5bd1e995")
class Sched:
    def __init__(self): self.issued = []; self.landed = -1
    def issue(self, name): self.issued.append(name)
    def wait(self, name):
        idx = self.issued.index(name)
        if idx > self.landed:
            a(f"s_waitcnt vmcnt({len(self.issued) - 1 - idx})")
            self.landed = idx
def ws_srd():
    a("s_mov_b32 s60, s32")
    a("s_mov_b32 s61, s33")
    a(f"s_mov_b32 s62, {WS_SIZE}")
    a("s_mov_b32 s63, 0x20000")

if DBG: a("s_memrealtime s[90:91]")
a("s_load_dwordx16 s[8:23], s[0:1], 0")
a("s_load_dwordx8 s[24:31], s[0:1], 64")
a("s_load_dwordx2 s[32:33], s[0:1], 96")
a("s_cmp_ge_u32 s2, 256")
a("s_cbranch_scc1 L_end")
a(f"v_and_b32 {VL}, 63, v0")
a(f"v_lshrrev_b32 {VT}, 6, v0")
a(f"v_mov_b32 {VZ}, 0")
a(f"v_readfirstlane_b32 {S_WAVE}, {VT}")
a("v_lshlrev_b32 v124, 4, v0")
if MAP in (0, 1, 3):
    a(f"s_and_b32 {S_H}, s2, 7")
    if MAP == 1: a(f"s_xor_b32 {S_H}, {S_H}, 4")
    if MAP == 3: a(f"s_xor_b32 {S_H}, {S_H}, 2")
    a(f"s_lshl_b32 {S_H}, {S_H}, 2")
    a(f"s_lshr_b32 {S_S}, s2, 3")
    a(f"s_and_b32 {S_S}, {S_S}, 3")
    a(f"s_or_b32 {S_H}, {S_H}, {S_S}")
    a(f"s_lshr_b32 {S_S}, s2, 5")
elif MAP == 2:
    a(f"s_lshr_b32 {S_H}, s2, 3")
    a(f"s_and_b32 {S_S}, s2, 7")
elif MAP == 4:
    a(f"s_and_b32 {S_H}, s2, 7")
    a(f"s_lshr_b32 {S_S}, s2, 3")
    a(f"s_and_b32 {S_S}, {S_S}, 3")
    a(f"s_lshl_b32 {S_S}, {S_S}, 3")
    a(f"s_or_b32 {S_H}, {S_H}, {S_S}")
    a(f"s_lshr_b32 {S_S}, s2, 5")
a(f"s_lshl_b32 {S_P}, {S_H}, 3")
a(f"s_or_b32 {S_P}, {S_P}, {S_S}")
a(f"s_cmp_lg_u32 {S_WAVE}, 8")
a("s_cbranch_scc1 L_noinit")
a(f"v_lshlrev_b32 {VT}, 2, {VL}")
a(f"ds_write_b32 {VT}, {VZ}")
if OADD:
    a(f"ds_write_b32 {VT}, {VZ} offset:{L_OA}")
    a(f"ds_write_b32 {VT}, {VZ} offset:{L_OA+256}")
a("s_waitcnt lgkmcnt(0)")
a.label("L_noinit")
a("s_barrier")
a(f"s_lshl_b32 s38, {S_P}, 18")
a("s_mov_b32 s42, 0x40000")
a("s_mov_b32 s43, 0x20000")
a("s_mov_b32 s46, 0x40000")
a("s_mov_b32 s47, 0x20000")
a(f"s_cmp_ge_u32 {S_WAVE}, 8")
a("s_waitcnt lgkmcnt(0)")
if DIAG: a("s_memrealtime s[80:81]")
a("s_cbranch_scc1 L_svc")
if ROT == 1:
    a("s_mul_i32 s7, s2, 5"); a("s_and_b32 s7, s7, 31"); a("s_lshl_b32 s7, s7, 13")
elif ROT == 2:
    a(f"s_lshl_b32 s7, {S_S}, 15")
elif ROT == 3:
    a("s_mul_i32 s7, s2, 0x9e3779b1"); a("s_lshr_b32 s7, s7, 27"); a("s_lshl_b32 s7, s7, 13")
a("s_add_u32 s40, s10, s38")
a("s_addc_u32 s41, s11, 0")
a("s_add_u32 s44, s12, s38")
a("s_addc_u32 s45, s13, 0")
sch = Sched()
NA, NB = 0, 64
def slot(kind, i):
    if kind == "K":
        if i < 16: return 4 * i
        if i < 24: return 32 + 4 * (i - 16)
        return 64 + 4 * (i - 24)
    else:
        if i < 8: return 64 + 4 * i
        if i < 16: return 4 * (i - 8)
        if i < 24: return 4 * (i - 16)
        return 32 + 4 * (i - 24)
order = [("K", i) for i in range(16)] + [("V", i) for i in range(16)] + [("K", i) for i in range(16, 32)] + [("V", i) for i in range(16, 32)]
def issue(n):
    k, i = order[n]
    D = DEPTH0 if n < N1 else (DEPTH if n < N2 else DEPTH2)
    if n >= D: sch.wait("%s%d" % order[n - D])
    d = slot(k, i)
    srd = KSRD if k == "K" else VSRD
    if ROT:
        a(f"s_add_u32 s67, s7, {i*8192}")
        a("s_and_b32 s67, s67, 0x3ffff")
        a(f"buffer_load_dwordx4 v[{d}:{d+3}], v124, {srd}, s67 offen nt")
    elif i == 0:
        a(f"buffer_load_dwordx4 v[{d}:{d+3}], v124, {srd}, 0 offen nt")
    else:
        a(f"s_mov_b32 s67, {i*8192}")
        a(f"buffer_load_dwordx4 v[{d}:{d+3}], v124, {srd}, s67 offen nt")
    sch.issue(f"{k}{i}")
def qk(i):
    sch.wait(f"K{i}")
    d = slot("K", i)
    for j in range(4 if not NOCOMP else 0):
        a(f"v_dot2c_f32_bf16 v{96 + i % 16}, v{d+j}, v{112+j}")
def pv(j):
    sch.wait(f"V{j}")
    d = slot("V", j)
    for t in range(4 if not NOCOMP else 0):
        a(f"v_dot2c_f32_bf16_dpp v{116+2*t}, v110, v{d+t} row_newbcast:{j % 16} {DPPF}")
        a(f"v_dot2c_f32_bf16_dpp v{117+2*t}, v111, v{d+t} row_newbcast:{j % 16} {DPPF}")
def butterfly():
    for i in range(8):
        a(f"v_add_f32_dpp v{96+i}, v{96+i}, v{96+i} row_ror:8 row_mask:0xf bank_mask:0x3")
        a(f"v_add_f32_dpp v{96+i}, v{104+i}, v{104+i} row_ror:8 row_mask:0xf bank_mask:0xc")
    for i in range(4):
        a(f"v_add_f32_dpp v{96+i}, v{96+i}, v{96+i} row_ror:12 row_mask:0xf bank_mask:0x5")
        a(f"v_add_f32_dpp v{96+i}, v{100+i}, v{100+i} row_ror:4 row_mask:0xf bank_mask:0xa")
    for i in range(4):
        a(f"v_add_f32_dpp v{96+i}, v{96+i}, v{96+i} quad_perm:[2,3,0,1] {DPPF}")
    a("v_cndmask_b32 v96, v96, v98, s[68:69]")
    a("v_cndmask_b32 v97, v97, v99, s[68:69]")
    a(f"v_add_f32_dpp v96, v96, v96 quad_perm:[1,0,3,2] {DPPF}")
    a(f"v_add_f32_dpp v97, v97, v97 quad_perm:[1,0,3,2] {DPPF}")
    a("v_cndmask_b32 v96, v96, v97, s[70:71]")
    a("v_mul_f32 v96, s78, v96")
    a("v_mov_b32 v97, v96")
    wave_reduce_to63("v_max_f32", 97)
C = {n: [] for n in range(64)}
def at(n, f): C[n].append(f)
def setup_scalars():
    ws_srd()
    a("s_mov_b32 s68, 0xcccccccc")
    a("s_mov_b32 s69, 0xcccccccc")
    a("s_mov_b32 s70, 0xaaaaaaaa")
    a("s_mov_b32 s71, 0xaaaaaaaa")
    a(f"s_mov_b32 s78, {f2u(SC):#x}")
    a(f"s_load_dword s6, s[32:33], {EPO}")
    a(f"v_and_b32 v121, 15, {VL}")
    a("v_lshlrev_b32 v121, 4, v121")
    for i in range(16): a(f"v_mov_b32 v{96+i}, 0")
at(min(DEPTH, DEPTH0) - 1, setup_scalars)
def qwait():
    if not NOQW: lds_wait_flag(L_FQ)
    a(f"ds_read_b128 v[112:115], v121 offset:{L_Q}")
    stamp(1)
    a("s_waitcnt lgkmcnt(0)")
at(QW, qwait)
qs = QW
for g in range(4):
    for i in range(4 * g, 4 * g + 4): at(qs + g, lambda i=i: qk(i))
def softmax0():
    butterfly()
    a("v_readlane_b32 s72, v97, 63")
    a("v_subrev_f32 v96, s72, v96")
    a("v_exp_f32 v96, v96")
    a("v_cvt_pk_bf16_f32 v110, v96, 0")
    a("v_cvt_pk_bf16_f32 v111, 0, v96")
    a("v_mov_b32 v97, v111")
    wave_reduce_to63("v_add_f32", 97)
    a("v_readlane_b32 s73, v97, 63")
    for j in range(8): a(f"v_mov_b32 v{116+j}, 0")
    make_tags()
    stamp(2)
s0 = qs + 4
at(s0, softmax0)
for j in range(8): at(s0 + 1 + j // 2, lambda j=j: pv(j))
p8 = s0 + 5
pvn = {}
for j in range(8):
    pvn[j] = max(p8 + j // 2, 24 + j + DEPTH)
    at(pvn[j], lambda j=j: pv(8 + j))
nz = pvn[7]
assert s0 + 4 < 40, "PV(V0..7) must finish before K24 issue"
assert nz < 48
def zeroS():
    for i in range(16): a(f"v_mov_b32 v{96+i}, 0")
at(nz, zeroS)
qkn = {}
prev = nz
cnt = 0
for j in range(16):
    n = max(nz, 32 + j + DEPTH)
    while qkn and sum(1 for v in qkn.values() if v == n) >= 3: n += 1
    if qkn: n = max(n, max(qkn.values()))
    while sum(1 for v in qkn.values() if v == n) >= 3: n += 1
    qkn[j] = n
    at(n, lambda j=j: qk(16 + j))
    assert j >= 8 or n < 56 + j, (j, n)
ns = qkn[15]
def softmax1():
    butterfly()
    a("v_readlane_b32 s74, v97, 63")
    a("v_mov_b32 v98, s72")
    a("v_max_f32 v98, s74, v98")
    a("v_sub_f32 v96, v96, v98")
    a("v_sub_f32 v99, s72, v98")
    a("v_exp_f32 v96, v96")
    a("v_exp_f32 v99, v99")
    a("v_readfirstlane_b32 s72, v98")
    a("v_cvt_pk_bf16_f32 v110, v96, 0")
    a("v_cvt_pk_bf16_f32 v111, 0, v96")
    for j in range(8): a(f"v_mul_f32 v{116+j}, v99, v{116+j}")
    a("s_mov_b64 exec, 1")
    a(f"s_lshl_b32 s38, {S_WAVE}, 2")
    a("v_mov_b32 v97, s38")
    a(f"ds_write_b32 v97, v98 offset:{L_M}")
    a("v_mov_b32 v98, 1")
    a(f"ds_add_u32 {VZ}, v98 offset:{L_MC}")
    a("s_mov_b64 exec, -1")
    a("v_mov_b32 v97, v111")
    wave_reduce_to63("v_add_f32", 97)
    a("v_mul_f32 v99, s73, v99")
    a("v_readlane_b32 s73, v97, 63")
    a("v_add_f32 v102, s73, v99")
    stamp(3)
at(ns, softmax1)
done = 16
for n in range(ns + 1, 64):
    k = 0
    while done < 32 and k < 2 and (48 + (done - 16) + DEPTH2) <= n:
        at(n, lambda j=done: pv(j)); done += 1; k += 1
for j in range(8): assert qs + j // 4 < 24 + j
for j in range(8): assert qs + (8 + j) // 4 < 32 + j
for j in range(8): assert pvn[j] < 48 + j
for n in range(64):
    issue(n)
    for f in C[n]: f()
lds_wait_flag(L_MC, "s_cmp_ge_u32", "8", sleep=1)
a(f"v_and_b32 v99, 7, {VL}")
a("v_lshlrev_b32 v99, 2, v99")
a(f"ds_read_b32 v100, v99 offset:{L_M}")
a(f"v_lshrrev_b32 v98, 4, {VL}")
a(f"v_and_b32 v103, 15, {VL}")
a("v_lshlrev_b32 v103, 5, v103")
a("v_lshl_add_u32 v103, v98, 3, v103")
a(f"s_mul_i32 s38, {S_WAVE}, {OPS}")
a("v_add_u32 v104, s38, v103")
a("s_waitcnt lgkmcnt(0)")
a(f"v_max_f32_dpp v100, v100, v100 quad_perm:[1,0,3,2] {DPPF}")
a(f"v_max_f32_dpp v100, v100, v100 quad_perm:[2,3,0,1] {DPPF}")
a(f"v_max_f32_dpp v100, v100, v100 row_half_mirror {DPPF}")
a("v_sub_f32 v101, s72, v100")
a("v_exp_f32 v101, v101")
a(f"s_lshl_b32 s38, {S_WAVE}, 2")
a("v_mov_b32 v99, s38")
a("v_mul_f32 v102, v102, v101")
a("s_mov_b64 exec, 1")
a(f"ds_write_b32 v99, v102 offset:{L_L}")
if MLE:
    a("v_mov_b32 v99, 1")
    a(f"ds_add_u32 {VZ}, v99 offset:{L_LC}")
a("s_mov_b64 exec, -1")
for j in range(done, 32): pv(j)
stamp(4)
rowreduce8(list(range(116, 124)), 116, 117)
a("v_mul_f32 v116, v101, v116")
a("v_mul_f32 v117, v101, v117")
if OADD:
    a(f"ds_add_f32 v103, v116 offset:{L_OA}")
    a(f"ds_add_f32 v103, v117 offset:{L_OA+4}")
else:
    a(f"ds_write_b64 v104, v[116:117] offset:{L_OP}")
a.label("L_barA")
if not OADD:
    a(f"v_and_b32 v106, 7, {VL}")
    a(f"v_mul_u32_u24 v106, {OPS}, v106")
    a(f"v_bfe_u32 v107, {VL}, 3, 2")
    a("v_lshl_add_u32 v106, v107, 3, v106")
    a(f"s_lshl_b32 s38, {S_WAVE}, 5")
    a("v_add_u32 v106, s38, v106")
    a(f"s_lshl_b32 s38, {S_WAVE}, 4")
    a("v_lshl_add_u32 v107, v107, 2, s38")
    a("s_mov_b32 s38, 0x01010101")
    a("s_mov_b32 s39, 0")
a("s_waitcnt lgkmcnt(0)")
stamp(5)
a("s_barrier")
if not OADD:
    a(f"ds_read_b64 v[108:109], v106 offset:{L_OP}")
    a("s_waitcnt lgkmcnt(0)")
    for m in ("quad_perm:[1,0,3,2]", "quad_perm:[2,3,0,1]", "row_half_mirror"):
        a(f"v_add_f32_dpp v108, v108, v108 {m} {DPPF}")
        a(f"v_add_f32_dpp v109, v109, v109 {m} {DPPF}")
    a("v_cvt_pk_bf16_f32 v108, v108, v109")
    a("s_mov_b64 exec, s[38:39]")
    a(f"ds_write_b32 v107, v108 offset:{L_OPK}")
    a("s_mov_b64 exec, -1")
    a("s_waitcnt lgkmcnt(0)")
    a("s_barrier")
a(f"s_cmp_ge_u32 {S_WAVE}, 8")
a("s_cbranch_scc1 L_yphase")
if not MLE:
    a(f"s_cmp_lg_u32 {S_WAVE}, 0")
    a("s_cbranch_scc1 L_pubdone")
    a(f"v_and_b32 v99, 7, {VL}")
    a("v_lshlrev_b32 v99, 2, v99")
    a(f"ds_read_b32 v1, v99 offset:{L_L}")
    a("v_mov_b32 v2, s4")
    a("v_mov_b32 v3, s5")
    a("v_mov_b32 v0, v100")
    a("s_waitcnt lgkmcnt(0)")
    for m in ("quad_perm:[1,0,3,2]", "quad_perm:[2,3,0,1]", "row_half_mirror"):
        a(f"v_add_f32_dpp v1, v1, v1 {m} {DPPF}")
    a(f"s_lshl_b32 s38, {S_P}, 4")
    a(f"s_add_u32 s38, s38, {MLB}")
    a("s_mov_b64 exec, 1")
    a(f"buffer_store_dwordx4 v[0:3], {VZ}, {WSRD}, s38 offen sc1")
    a("s_mov_b64 exec, -1")
a("s_branch L_pubdone")
a.label("L_yphase")
if OADD:
    for q in range(4): a(f"ds_read_b128 v[{100+4*q}:{103+4*q}], v93 offset:{L_OA+16*q}")
    for q in range(4):
        a(f"s_waitcnt lgkmcnt({3-q})")
        a(f"v_cvt_pk_bf16_f32 v{72+2*q}, v{100+4*q}, v{101+4*q}")
        a(f"v_cvt_pk_bf16_f32 v{73+2*q}, v{102+4*q}, v{103+4*q}")
else:
    a(f"ds_read_b128 v[72:75], v105 offset:{L_OPK}")
    a(f"ds_read_b128 v[76:79], v105 offset:{L_OPK+16}")
    a("s_waitcnt lgkmcnt(0)")
PMAP = {}
spare = 64
for k in range(8):
    A_, B_ = 8 * k, 8 * k + 4
    PMAP[k] = (spare, B_)
    spare = A_
for k in range(8):
    lo, hi = PMAP[k]
    for j in range(4):
        a(f"v_dot2c_f32_bf16 v{80+2*j}, v{72+k}, v{lo+j}")
        a(f"v_dot2c_f32_bf16 v{81+2*j}, v{72+k}, v{hi+j}")
rowreduce8(list(range(80, 88)), 88, 89)
a(f"v_add_f32_dpp v88, v88, v88 row_ror:8 {DPPF}")
a(f"v_add_f32_dpp v89, v89, v89 row_ror:8 {DPPF}")
a(f"buffer_store_dwordx4 v[88:91], v92, {WSRD}, s79 offen sc1")
stamp(6)
a.label("L_pubdone")
a("s_cmp_ge_u32 s2, 0" if NORED else "s_cmp_ge_u32 s2, 32")
a("s_cbranch_scc1 L_fin")
a(f"s_lshl_b32 s38, {S_WAVE}, 6")
a(f"v_add_u32 v99, s38, {VL}")
a("v_lshlrev_b32 v98, 5, v99")
a("v_lshrrev_b32 v97, 2, v99")
a("v_lshlrev_b32 v97, 4, v97")
a("s_lshl_b32 s38, s2, 14")
a(f"s_add_u32 s38, s38, {YBB}")
a("s_add_u32 s52, s32, s38")
a("s_addc_u32 s53, s33, 0")
a(f"s_mov_b32 s54, {86*128}")
a("s_mov_b32 s55, 0x20000")
a("s_lshl_b32 s38, s2, 15")
a(f"s_add_u32 s38, s38, {YMB}")
a(f"s_mov_b32 s39, {MLB}")
a(f"ds_read_b64 v[24:25], {VZ} offset:{L_G}")
a("s_mov_b32 s79, 0x158")
a("v_cmp_gt_u32 s[72:73], s79, v99")
a(f"s_mov_b32 s75, {TMO_MEM}")
a.label("L_mlpoll")
a(f"buffer_load_dwordx4 v[8:11], v97, {WSRD}, s39 offen sc1")
a("s_waitcnt vmcnt(0)")
tag_bad([8], 20, 21)
a("s_cbranch_vccz L_mlok")
timeout_check()
a("s_sleep 2")
a("s_branch L_mlpoll")
a.label("L_mlok")
a.label("L_rpoll")
a(f"buffer_load_dwordx4 v[0:3], v98, {WSRD}, s38 offen sc1")
a(f"buffer_load_dwordx4 v[4:7], v98, {WSRD}, s38 offen offset:16 sc1")
a(f"buffer_load_dwordx4 v[12:15], v98, {TSRD}, 0 offen sc1")
a(f"buffer_load_dwordx4 v[16:19], v98, {TSRD}, 0 offen offset:16 sc1")
a("v_mov_b32 v26, v8")
a(f"v_max_f32_dpp v26, v26, v26 row_ror:4 {DPPF}")
a(f"v_max_f32_dpp v26, v26, v26 row_ror:8 {DPPF}")
a("v_mov_b32 v27, v26")
a("v_permlane16_swap_b32 v26, v27")
a("v_max_f32 v26, v26, v27")
a("v_sub_f32 v26, v8, v26")
a("v_exp_f32 v26, v26")
a("v_mul_f32 v28, v26, v9")
a(f"v_add_f32_dpp v28, v28, v28 row_ror:4 {DPPF}")
a(f"v_add_f32_dpp v28, v28, v28 row_ror:8 {DPPF}")
a("v_mov_b32 v27, v28")
a("v_permlane16_swap_b32 v28, v27")
a("v_add_f32 v28, v28, v27")
a("v_rcp_f32 v28, v28")
a("s_waitcnt lgkmcnt(0)")
a("v_mul_f32 v26, v26, v24")
a("v_mul_f32 v26, v26, v28")
a("s_waitcnt vmcnt(0)")
tag_bad([12, 16], 20, 21)
a("s_and_b64 s[76:77], vcc, s[72:73]")
tag_bad([0, 4], 20, 21)
a("s_or_b64 s[76:77], s[76:77], vcc")
a("s_cmp_eq_u64 s[76:77], 0")
a("s_cbranch_scc1 L_rok")
timeout_check()
a("s_branch L_rpoll")
a.label("L_rok")
stamp(7)
a("v_mul_f32 v12, v25, v12")
a("v_mul_f32 v13, v25, v13")
a("v_mul_f32 v16, v25, v16")
a("v_mul_f32 v17, v25, v17")
a("v_fma_f32 v2, v26, v4, v16")
a("v_fma_f32 v3, v26, v5, v17")
a("v_fma_f32 v0, v26, v0, v12")
a("v_fma_f32 v1, v26, v1, v13")
red16([0, 1, 2, 3])
a(f"v_and_b32 v8, 3, {VL}")
a("v_lshlrev_b32 v8, 4, v8")
a(f"v_lshrrev_b32 v9, 4, {VL}")
a("v_lshl_add_u32 v8, v9, 2, v8")
a(f"s_lshl_b32 s38, {S_WAVE}, 6")
a("v_add_u32 v9, s38, v8")
a("s_mov_b32 s38, 0x000f000f")
a("s_mov_b32 s39, 0x000f000f")
a("s_mov_b64 exec, s[38:39]")
a(f"ds_write_b32 v9, v0 offset:{L_RED}")
a("s_mov_b64 exec, -1")
a("s_waitcnt lgkmcnt(0)")
a("s_barrier")
a(f"s_cmp_lg_u32 {S_WAVE}, 0")
a("s_cbranch_scc1 L_fin")
a(f"v_lshlrev_b32 v9, 4, {VL}")
a(f"ds_read_b128 v[0:3], v9 offset:{L_RED}")
a("v_lshrrev_b32 v8, 1, v8")
a("s_lshl_b32 s79, s2, 5")
a("s_mov_b32 s52, s28")
a("s_mov_b32 s53, s29")
a("s_mov_b32 s54, 1024")
a("s_mov_b32 s55, 0x20000")
a("v_mov_b32 v4, s4")
a("s_waitcnt lgkmcnt(0)")
red16([0, 1, 2, 3])
a("v_cvt_pk_bf16_f32 v0, v0, 0")
a("s_mov_b64 exec, s[38:39]")
a(f"buffer_store_short v0, v8, {TSRD}, s79 offen" + ["", " sc1", " sc0 sc1", " nt"][OUTSC])
a("s_cmp_lg_u32 s2, 0")
a("s_cbranch_scc1 L_fin")
a("s_mov_b64 exec, 1")
a(f"s_mov_b32 s38, {EPO}")
a(f"buffer_store_dword v4, {VZ}, {WSRD}, s38 offen sc1")
a.label("L_fin")
a("s_mov_b64 exec, -1")
if DIAG:
    a("s_memrealtime s[96:97]")
    a("s_waitcnt lgkmcnt(0)")
    for k in range(11): a(f"v_mov_b32 v{k}, s{80+2*k}")
    a("s_getreg_b32 s38, hwreg(HW_REG_XCC_ID)")
    a("v_mov_b32 v11, s38")
    a("s_lshl_b32 s38, s2, 4")
    a(f"s_add_u32 s38, s38, {S_WAVE}")
    a("s_lshl_b32 s38, s38, 6")
    a(f"s_add_u32 s38, s38, {DIAGO}")
    a("s_mov_b64 exec, 1")
    a(f"buffer_store_dwordx4 v[0:3], {VZ}, {WSRD}, s38 offen")
    a(f"buffer_store_dwordx4 v[4:7], {VZ}, {WSRD}, s38 offen offset:16")
    a(f"buffer_store_dwordx4 v[8:11], {VZ}, {WSRD}, s38 offen offset:32")
if DBG:
    a("s_cmp_ge_u32 s2, 8")
    a("s_cbranch_scc1 L_end")
    a(f"s_cmp_lg_u32 {S_WAVE}, 0")
    a("s_cbranch_scc1 L_end")
    a("s_memrealtime s[92:93]")
    a("s_waitcnt lgkmcnt(0)")
    a("v_mov_b32 v0, s90")
    a("v_mov_b32 v1, s92")
    a("s_mov_b32 s52, s30")
    a("s_mov_b32 s53, s31")
    a("s_mov_b32 s54, 256")
    a("s_mov_b32 s55, 0x20000")
    a("s_lshl_b32 s38, s2, 3")
    a("s_mov_b64 exec, 1")
    a(f"buffer_store_dwordx2 v[0:1], {VZ}, {TSRD}, s38 offen")
a.label("L_end")
a("s_endpgm")

a.label("L_svc")
ws_srd()
if NOSVC:
    a("s_mov_b32 s79, 0x7fffffff")
    a("v_mov_b32 v104, 0")
    a("v_mov_b32 v105, 0")
    a("s_branch L_barA")
a(f"s_load_dword s6, s[32:33], {EPO}")
if TOUCH:
    a(f"s_cmp_lg_u32 {S_WAVE}, 15")
    a("s_cbranch_scc1 L_notouch")
    a(f"s_lshl_b32 s38, {S_P}, 18")
    a("s_add_u32 s44, s12, s38")
    a("s_addc_u32 s45, s13, 0")
    a(f"s_lshl_b32 s38, {S_H}, 17")
    a("s_add_u32 s48, s16, s38")
    a("s_addc_u32 s49, s17, 0")
    a("s_mov_b32 s50, 0x20000")
    a("s_mov_b32 s51, 0x20000")
    a("s_mov_b64 exec, 1")
    a(f"buffer_load_dword v0, {VZ}, {VSRD}, 0 offen nt")
    a(f"buffer_load_dword v1, {VZ}, {WOSRD}, 0 offen nt")
    a(f"s_mov_b32 s38, {YMB}")
    a(f"buffer_load_dword v2, {VZ}, {WSRD}, s38 offen sc1")
    a("s_mov_b32 s52, s28")
    a("s_mov_b32 s53, s29")
    a("s_mov_b32 s54, 1024")
    a("s_mov_b32 s55, 0x20000")
    a(f"buffer_load_dword v3, {VZ}, {TSRD}, 0 offen")
    a("s_mov_b64 exec, -1")
    a.label("L_notouch")
a(f"s_cmp_eq_u32 {S_WAVE}, 9")
a("s_cbranch_scc1 L_b1")
a(f"s_cmp_eq_u32 {S_WAVE}, 10")
a("s_cbranch_scc1 L_b2")
a(f"s_cmp_eq_u32 {S_WAVE}, 11")
a("s_cbranch_scc1 L_gate")
a(f"s_cmp_lg_u32 {S_WAVE}, 8")
a("s_cbranch_scc1 L_wo")
a(f"s_lshl_b32 s38, {S_S}, 19")
a(f"s_lshl_b32 s39, {S_H}, 8")
a("s_add_u32 s38, s38, s39")
a("s_add_u32 s52, s14, s38")
a("s_addc_u32 s53, s15, 0")
a("s_sub_u32 s54, 0x400000, s38")
a("s_mov_b32 s55, 0x20000")
a(f"v_lshrrev_b32 v122, 4, {VL}")
a(f"v_and_b32 v121, 15, {VL}")
a("v_lshlrev_b32 v120, 17, v122")
a("v_lshl_add_u32 v120, v121, 4, v120")
a("v_lshlrev_b32 v119, 5, v122")
a(f"s_lshl_b32 s38, {S_S}, 7")
a("v_add_u32 v119, s38, v119")
a("global_load_dwordx4 v[64:67], v119, s[8:9]")
a("global_load_dwordx4 v[68:71], v119, s[8:9] offset:16")
for i in range(16 if not NOWQ else 0):
    a(f"buffer_load_dwordx4 v[{4*i}:{4*i+3}], v120, {TSRD}, 0 offen nt")
    if i < 15: a("v_add_u32 v120, 0x2000, v120")
for j in range(8): a(f"v_mov_b32 v{104+j}, 0")
a("s_waitcnt vmcnt(16)")
for k in range(8):
    a(f"v_and_b32 v{72+4*k}, 0xffff, v{64+k}")
    a(f"v_lshlrev_b32 v{73+4*k}, 16, v{64+k}")
    a(f"v_lshrrev_b32 v{74+4*k}, 16, v{64+k}")
    a(f"v_and_b32 v{75+4*k}, 0xffff0000, v{64+k}")
for i in range(16):
    a(f"s_waitcnt vmcnt({15 - i})")
    for j in range(4):
        a(f"v_dot2c_f32_bf16 v{104+2*j}, v{72+2*i}, v{4*i+j}")
        a(f"v_dot2c_f32_bf16 v{105+2*j}, v{73+2*i}, v{4*i+j}")
rowreduce8(list(range(104, 112)), 104, 105)
a("s_waitcnt lgkmcnt(0)")
make_tags()
a("v_mov_b32 v106, s4")
a("v_mov_b32 v107, s5")
a("v_lshlrev_b32 v119, 6, v121")
a("v_lshl_add_u32 v119, v122, 4, v119")
a(f"s_lshl_b32 s79, {S_P}, 10")
a(f"buffer_store_dwordx4 v[104:107], v119, {WSRD}, s79 offen sc1")
stamp(9)
if QACK: a("s_waitcnt vmcnt(0)")
a(f"v_lshlrev_b32 v119, 4, {VL}")
a(f"s_lshl_b32 s79, {S_H}, 13")
a("s_add_u32 s38, s79, 4096")
a(f"s_mov_b32 s75, {TMO_MEM}")
a.label("L_qpoll")
if NOQP: a("s_branch L_qok")
for i in range(8):
    so = "s79" if i < 4 else "s38"
    a(f"buffer_load_dwordx4 v[{4*i}:{4*i+3}], v119, {WSRD}, {so} offen offset:{1024*(i%4)} sc1")
a("s_waitcnt vmcnt(0)")
tag_bad([4*i for i in range(8)], 32, 33)
a("s_cbranch_vccz L_qok")
timeout_check()
a("s_branch L_qpoll")
a.label("L_qok")
for j in range(2):
    a(f"v_add_f32 v{j}, v{j}, v{4+j}")
    a(f"v_add_f32 v{8+j}, v{8+j}, v{12+j}")
    a(f"v_add_f32 v{16+j}, v{16+j}, v{20+j}")
    a(f"v_add_f32 v{24+j}, v{24+j}, v{28+j}")
for j in range(2):
    a(f"v_add_f32 v{j}, v{j}, v{8+j}")
    a(f"v_add_f32 v{16+j}, v{16+j}, v{24+j}")
for j in range(2): a(f"v_add_f32 v{j}, v{j}, v{16+j}")
a("v_cvt_pk_bf16_f32 v0, v0, v1")
a(f"v_lshlrev_b32 v119, 2, {VL}")
a(f"ds_write_b32 v119, v0 offset:{L_Q}")
a("s_waitcnt lgkmcnt(0)")
lds_set_flag(L_FQ)
stamp(10)
a("s_branch L_wo2")

a.label("L_b1")
if NOB1: a("s_branch L_wo")
a("s_cmp_ge_u32 s2, 172")
a("s_cbranch_scc1 L_wo")
a("s_and_b32 s38, s2, 3")
a(f"s_mul_i32 s39, s38, {64*5504}")
a("s_lshr_b32 s79, s2, 2")
a("s_lshl_b32 s74, s79, 7")
a("s_add_u32 s39, s39, s74")
a("s_add_u32 s52, s20, s39")
a("s_addc_u32 s53, s21, 0")
a(f"s_sub_u32 s54, {512*2752}, s39")
a("s_mov_b32 s55, 0x20000")
a("s_add_u32 s48, s22, s39")
a("s_addc_u32 s49, s23, 0")
a("s_mov_b32 s50, s54")
a("s_mov_b32 s51, 0x20000")
a(f"v_lshrrev_b32 v122, 3, {VL}")
a(f"v_and_b32 v121, 7, {VL}")
a(f"v_mul_u32_u24 v120, {8*5504}, v122")
a("v_lshl_add_u32 v120, v121, 4, v120")
a("v_lshlrev_b32 v119, 5, v122")
a("s_lshl_b32 s38, s38, 8")
a("v_add_u32 v119, s38, v119")
a("global_load_dwordx4 v[64:67], v119, s[8:9]")
a("global_load_dwordx4 v[68:71], v119, s[8:9] offset:16")
a("s_lshl_b32 s74, s79, 6")
a("v_lshl_add_u32 v118, v121, 3, s74")
a("s_movk_i32 s74, 1375")
a("v_cmp_lt_u32 vcc, s74, v118")
a("v_cndmask_b32 v118, 0, 16, vcc")
nl = 0
for i in range(8):
    for srd, base in ((TSRD, 0), (WOSRD, 32)):
        if nl >= BD: a(f"s_waitcnt vmcnt({BD-1})")
        a(f"buffer_load_dwordx4 v[{base+4*i}:{base+4*i+3}], v120, {srd}, 0 offen nt"); nl += 1
    if i < 7: a("v_add_u32 v120, 5504, v120")
for j in range(16): a(f"v_mov_b32 v{96+j}, 0")
a("s_waitcnt vmcnt(0)")
for i in range(8):
    a(f"v_lshrrev_b32 v117, v118, v{64+i}")
    a(f"v_and_b32 v{72+2*i}, 0xffff, v117")
    a(f"v_lshlrev_b32 v{73+2*i}, 16, v117")
for i in range(8):
    for j in range(4):
        a(f"v_dot2c_f32_bf16 v{96+2*j}, v{72+2*i}, v{4*i+j}")
        a(f"v_dot2c_f32_bf16 v{97+2*j}, v{73+2*i}, v{4*i+j}")
        a(f"v_dot2c_f32_bf16 v{104+2*j}, v{72+2*i}, v{32+4*i+j}")
        a(f"v_dot2c_f32_bf16 v{105+2*j}, v{73+2*i}, v{32+4*i+j}")
for b in (96, 104):
    for j in range(4): a(f"v_permlane32_swap_b32 v{b+j}, v{b+4+j}")
for b in (96, 104):
    for j in range(4): a(f"v_add_f32 v{b+j}, v{b+j}, v{b+4+j}")
for b in (96, 104):
    for j in range(2): a(f"v_permlane16_swap_b32 v{b+j}, v{b+2+j}")
for b in (96, 104):
    for j in range(2): a(f"v_add_f32 v{b+j}, v{b+j}, v{b+2+j}")
for b in (96, 104):
    a(f"v_add_f32_dpp v{b}, v{b}, v{b} row_ror:8 row_mask:0xf bank_mask:0x3")
    a(f"v_add_f32_dpp v{b}, v{b+1}, v{b+1} row_ror:8 row_mask:0xf bank_mask:0xc")
a("s_waitcnt lgkmcnt(0)")
make_tags()
a("v_mov_b32 v97, v104")
a("v_mov_b32 v98, s4")
a("v_mov_b32 v99, s5")
a(f"v_bfe_u32 v100, {VL}, 5, 1")
a("v_lshlrev_b32 v100, 2, v100")
a(f"v_bfe_u32 v101, {VL}, 4, 1")
a("v_lshl_add_u32 v100, v101, 1, v100")
a(f"v_bfe_u32 v101, {VL}, 3, 1")
a("v_add_u32 v100, v100, v101")
a("v_lshl_add_u32 v100, v121, 3, v100")
a("v_lshlrev_b32 v100, 4, v100")
a("s_lshl_b32 s79, s2, 10")
a(f"s_add_u32 s79, s79, {BMB}")
a(f"buffer_store_dwordx4 v[96:99], v100, {WSRD}, s79 offen sc1")
stamp(9)
a("s_branch L_wo")

a.label("L_b2")
if NOB2: a("s_branch L_wo")
a("s_cmp_lt_u32 s2, 170")
a("s_cbranch_scc1 L_wo")
a("s_sub_u32 s79, s2, 170")
a("s_lshl_b32 s38, s79, 14")
a("s_add_u32 s52, s24, s38")
a("s_addc_u32 s53, s25, 0")
a("s_mov_b32 s54, 16384")
a("s_mov_b32 s55, 0x20000")
a(f"v_lshlrev_b32 v102, 4, {VL}")
for i in range(16):
    if i >= BD: a(f"s_waitcnt vmcnt({BD-1})")
    a(f"s_mov_b32 s67, {i*1024}")
    a(f"buffer_load_dwordx4 v[{4*i}:{4*i+3}], v102, {TSRD}, s67 offen nt")
a(f"v_and_b32 v114, 15, {VL}")
a("s_lshl_b32 s38, s79, 4")
a("v_add_u32 v114, s38, v114")
a("v_add_u32 v115, 1376, v114")
a(f"v_lshrrev_b32 v103, 4, {VL}")
a("v_lshlrev_b32 v103, 10, v103")
for r, d in ((114, 116), (115, 117)):
    a(f"v_lshrrev_b32 v{d}, 6, v{r}")
    a(f"v_lshlrev_b32 v{d}, 12, v{d}")
    a(f"v_and_b32 v{r}, 63, v{r}")
    a(f"v_lshl_add_u32 v{d}, v{r}, 4, v{d}")
    a(f"v_add_u32 v{d}, v{d}, v103")
lds_wait_flag(L_FQ, sleep=8)
a(f"s_mov_b32 s38, {BMB}")
make_tags()
a(f"s_mov_b32 s75, {TMO_MEM}")
a.label("L_bpoll")
if NOB1: a("s_branch L_bok")
a(f"buffer_load_dwordx4 v[104:107], v116, {WSRD}, s38 offen sc1")
a(f"buffer_load_dwordx4 v[108:111], v117, {WSRD}, s38 offen sc1")
a("s_waitcnt vmcnt(0)")
tag_bad([104, 108], 100, 101)
a("s_cbranch_vccz L_bok")
timeout_check()
a("s_sleep 8")
a("s_branch L_bpoll")
a.label("L_bok")
a("v_add_f32 v112, v104, v108")
a("v_add_f32 v113, v105, v109")
for r in (112, 113):
    a(f"v_mov_b32 v100, v{r}")
    a(f"v_permlane16_swap_b32 v{r}, v100")
    a(f"v_add_f32 v{r}, v{r}, v100")
    a(f"v_mov_b32 v100, v{r}")
    a(f"v_permlane32_swap_b32 v{r}, v100")
    a(f"v_add_f32 v{r}, v{r}, v100")
rb16(112, 112)
rb16(113, 113)
a("v_mul_f32 v114, v112, v113")
a("v_cvt_pk_bf16_f32 v112, v114, 0")
a("v_cvt_pk_bf16_f32 v113, 0, v114")
for j in range(8): a(f"v_mov_b32 v{96+j}, 0")
for i in range(16):
    for j in range(4):
        a(f"v_dot2c_f32_bf16_dpp v{96+2*j}, v112, v{4*i+j} row_newbcast:{i} {DPPF}")
        a(f"v_dot2c_f32_bf16_dpp v{97+2*j}, v113, v{4*i+j} row_newbcast:{i} {DPPF}")
a(f"v_lshlrev_b32 v114, 5, {VL}")
a(f"ds_write_b128 v114, v[96:99] offset:{L_YT}")
a(f"ds_write_b128 v114, v[100:103] offset:{L_YT+16}")
a(f"v_lshlrev_b32 v114, 3, {VL}")
a("s_waitcnt lgkmcnt(0)")
for k in range(4):
    a(f"ds_read_b64 v[{96+4*k}:{97+4*k}], v114 offset:{L_YT + 512*k}")
for k in range(4):
    a(f"v_mov_b32 v{98+4*k}, s4")
    a(f"v_mov_b32 v{99+4*k}, s5")
a(f"v_lshrrev_b32 v114, 3, {VL}")
a("v_lshlrev_b32 v114, 14, v114")
a(f"v_and_b32 v115, 7, {VL}")
a("v_lshl_add_u32 v114, v115, 4, v114")
a("s_lshl_b32 s38, s79, 7")
a(f"s_add_u32 s38, s38, {YBB}")
a("s_waitcnt lgkmcnt(0)")
for k in range(4):
    a(f"buffer_store_dwordx4 v[{96+4*k}:{99+4*k}], v114, {WSRD}, s38 offen sc1")
    if k < 3: a("s_add_u32 s38, s38, 0x20000")
stamp(9)
a("s_branch L_wo")

a.label("L_gate")
a("s_cmp_ge_u32 s2, 32")
a("s_cbranch_scc1 L_wo")
a(f"v_lshlrev_b32 v102, 4, {VL}")
a("global_load_dwordx4 v[8:11], v102, s[8:9]")
a("global_load_dwordx4 v[12:15], v102, s[26:27]")
a("v_mov_b32 v16, 0")
a("s_mov_b32 s38, 0x3f803f80")
a("s_waitcnt vmcnt(0)")
for j in range(4):
    a(f"v_lshlrev_b32 v17, 16, v{8+j}")
    a(f"v_lshlrev_b32 v18, 16, v{12+j}")
    a(f"v_and_b32 v19, 0xffff0000, v{8+j}")
    a(f"v_and_b32 v20, 0xffff0000, v{12+j}")
    a("v_mul_f32 v17, v17, v18")
    a("v_mul_f32 v19, v19, v20")
    a("v_cvt_pk_bf16_f32 v17, v17, v19")
    a("v_dot2c_f32_bf16 v16, s38, v17")
wave_reduce_to63("v_add_f32", 16)
a("v_readlane_b32 s38, v16, 63")
a("v_mov_b32 v16, s38")
rb16(16, 16)
a(f"v_mul_f32 v16, {f2u(-1.4426950408889634):#x}, v16")
a("v_exp_f32 v16, v16")
a("v_add_f32 v16, 1.0, v16")
a("v_rcp_f32 v16, v16")
rb16(16, 16)
a("v_sub_f32 v17, 1.0, v16")
rb16(17, 17)
a("s_mov_b64 exec, 1")
a(f"ds_write_b64 {VZ}, v[16:17] offset:{L_G}")
a("s_mov_b64 exec, -1")
a.label("L_wo")
lds_wait_flag(L_FQ, sleep=8)
a.label("L_wo2")
a(f"s_lshl_b32 s38, {S_H}, 17")
a("s_add_u32 s48, s16, s38")
a("s_addc_u32 s49, s17, 0")
a("s_mov_b32 s50, 0x20000")
a("s_mov_b32 s51, 0x20000")
a("s_mov_b32 s76, 0x05040100")
a("s_mov_b32 s77, 0x07060302")
a(f"v_lshrrev_b32 v122, 3, {VL}")
a(f"v_and_b32 v121, 7, {VL}")
a("v_lshlrev_b32 v120, 14, v122")
a("v_lshl_add_u32 v120, v121, 4, v120")
a(f"s_sub_u32 s74, {S_WAVE}, 8")
a("s_lshl_b32 s38, s74, 7")
a("v_add_u32 v120, s38, v120")
sw = Sched()
for i in range(16):
    if i >= WOD and not NOWO: sw.wait(f"W{i-WOD}")
    a(f"s_mov_b32 s67, {i*1024}")
    if not NOWO: a(f"buffer_load_dwordx4 v[{4*i}:{4*i+3}], v120, {WOSRD}, s67 offen nt")
    sw.issue(f"W{i}")
a("v_lshlrev_b32 v105, 5, v122")
a("v_lshlrev_b32 v93, 6, v122")
a(f"v_bfe_u32 v100, {VL}, 5, 1")
a("v_lshlrev_b32 v100, 1, v100")
a(f"v_bfe_u32 v101, {VL}, 4, 1")
a("v_add_u32 v100, v100, v101")
a("v_lshl_add_u32 v100, v121, 2, v100")
a("v_lshrrev_b32 v101, 3, v100")
a("v_lshlrev_b32 v101, 15, v101")
a("v_and_b32 v100, 7, v100")
a("v_lshl_add_u32 v92, v100, 4, v101")
a(f"v_bfe_u32 v101, {VL}, 3, 1")
a("v_lshl_or_b32 v92, v101, 31, v92")
a("s_lshl_b32 s38, s74, 17")
a(f"s_lshl_b32 s79, {S_P}, 7")
a("s_add_u32 s79, s79, s38")
a(f"s_add_u32 s79, s79, {YMB}")
a("s_waitcnt lgkmcnt(0)")
make_tags()
a("v_mov_b32 v90, s4")
a("v_mov_b32 v91, s5")
for k in range(8):
    sw.wait(f"W{2*k+1}")
    lo, hi = PMAP[k]
    A_, B_ = 8 * k, 8 * k + 4
    for j in range(4): a(f"v_perm_b32 v{lo+j}, v{B_+j}, v{A_+j}, s76")
    for j in range(4): a(f"v_perm_b32 v{hi+j}, v{B_+j}, v{A_+j}, s77")
for j in range(80, 88): a(f"v_mov_b32 v{j}, 0")
stamp(4)
if MLE:
    a(f"s_cmp_lg_u32 {S_WAVE}, 12")
    a("s_cbranch_scc1 L_barA")
    lds_wait_flag(L_LC, "s_cmp_ge_u32", "8", sleep=2)
    a(f"v_and_b32 v99, 7, {VL}")
    a("v_lshlrev_b32 v99, 2, v99")
    a(f"ds_read_b32 v96, v99 offset:{L_M}")
    a(f"ds_read_b32 v97, v99 offset:{L_L}")
    a("v_mov_b32 v98, s4")
    a("v_mov_b32 v99, s5")
    a("s_waitcnt lgkmcnt(0)")
    for m in ("quad_perm:[1,0,3,2]", "quad_perm:[2,3,0,1]", "row_half_mirror"):
        a(f"v_max_f32_dpp v96, v96, v96 {m} {DPPF}")
        a(f"v_add_f32_dpp v97, v97, v97 {m} {DPPF}")
    a(f"s_lshl_b32 s38, {S_P}, 4")
    a(f"s_add_u32 s38, s38, {MLB}")
    a("s_mov_b64 exec, 1")
    a(f"buffer_store_dwordx4 v[96:99], {VZ}, {WSRD}, s38 offen sc1")
    a("s_mov_b64 exec, -1")
a("s_branch L_barA")

src = header(256, 1024, LDS_SIZE) + DOC.lstrip("\n") + kstart() + a.text() + kdesc(vgpr=128, sgpr=102 if (DIAG or DBG) else 80)
open(OUT, "w").write(src)
print("lines", len(a.lines), "lds", LDS_SIZE)
```

```python
import sys, struct
from emit import Asm
from hdr import *

DIAG = "-diag" in sys.argv
OUT = sys.argv[1]
def opt(name, default):
    for x in sys.argv:
        if x.startswith(f"-{name}="): return int(x.split("=")[1])
    return default
DEPTH = opt("depth", 3)
WOD = opt("wod", 2)
DEPTH2 = opt("depth2", 8)
N2 = opt("n2", 48)
DEPTH0 = opt("depth0", DEPTH)
N1 = opt("n1", 0)
BD = opt("bd", 4)
NORED = "-nored" in sys.argv
DBG = "-dbg" in sys.argv
NOCOMP = "-nocomp" in sys.argv
NOQW = "-noqw" in sys.argv
NOSVC = "-nosvc" in sys.argv
NOQP = "-noqp" in sys.argv
NOB1 = "-nob1" in sys.argv
NOB2 = "-nob2" in sys.argv
NOWO = "-nowo" in sys.argv
NOWQ = "-nowq" in sys.argv
QACK = "-noqack" not in sys.argv
QW = opt("qw", 23)
MAP = opt("map", 0)
ROT = opt("rot", 0)
OADD = "-oadd" in sys.argv
OUTSC = opt("outsc", 0)
TOUCH = "-touch" in sys.argv
PRIO = opt("prio", 0)
STAG = opt("stag", 8)
SINGLE = "-single" in sys.argv
YSL = opt("ysl", 0)
MLE = "-nomle" not in sys.argv
def f2u(x): return struct.unpack("<I", struct.pack("<f", x))[0]

QMB, BMB, QM2, MLB, EPO, YBB, YMB, DIAGO = 0x0, 0x40000, 0x6C000, 0x70000, 0x7F000, 0x80000, 0x100000, 0x200000
WS_SIZE = 0x300000
L_FQ, L_MC, L_LC = 8, 12, 16
L_OA = 0x800
L_M, L_L, L_Q, L_OPK, L_G = 0x40, 0x80, 0x100, 0x200, 0x340
L_OP, OPS = 0x400, 544
L_RED = 0x400 + 8 * 544
L_YT = L_RED + 1024
LDS_SIZE = L_YT + 2048
SC = (128 ** -0.5) * 1.4426950408889634
TMO_LDS = 1 << 20
TMO_MEM = 1 << 16


DOC = """
; ---------------------------------------------------------------------------------------------
;   workgroup wg -> head h = (wg%8)*4 + (wg/8)%4, key split s = wg/32 (1024 keys each).
;   Cross-workgroup hand-offs: 16-byte granules {d0, d1, tag1, tag2} written/read with sc1; the tag
; ---------------------------------------------------------------------------------------------
"""
a = Asm()
DPPF = "row_mask:0xf bank_mask:0xf"
S_WAVE, S_H, S_S, S_P = "s34", "s35", "s36", "s37"
KSRD, VSRD, WOSRD, TSRD, WSRD = "s[40:43]", "s[44:47]", "s[48:51]", "s[52:55]", "s[60:63]"
VL, VZ, VT = "v125", "v127", "v126"

def stamp(idx):
    if DIAG: a(f"s_memrealtime s[{80+2*idx}:{81+2*idx}]")
def timeout_check(lbl_abort="L_end"):
    a("s_sub_u32 s75, s75, 1")
    a("s_cmp_eq_u32 s75, 0")
    a(f"s_cbranch_scc1 {lbl_abort}")
_lc = [0]
def newlabel(p):
    _lc[0] += 1
    return f"L_{p}{_lc[0]}"
def lds_wait_flag(off, cmp_op="s_cmp_lg_u32", val="0", sleep=2):
    l0, l1 = newlabel("lw"), newlabel("lwd")
    a(f"s_mov_b32 s75, {TMO_LDS}")
    a.label(l0)
    a(f"ds_read_b32 {VT}, {VZ} offset:{off}")
    a("s_waitcnt lgkmcnt(0)")
    a(f"v_readfirstlane_b32 s38, {VT}")
    a(f"{cmp_op} s38, {val}")
    a(f"s_cbranch_scc1 {l1}")
    timeout_check()
    a(f"s_sleep {sleep}")
    a(f"s_branch {l0}")
    a.label(l1)
def lds_set_flag(off):
    a("s_mov_b64 exec, 1")
    a(f"v_mov_b32 {VT}, 1")
    a(f"ds_write_b32 {VZ}, {VT} offset:{off}")
    a("s_mov_b64 exec, -1")
def rowreduce8(acc, o0, o1):
    for j in range(4): a(f"v_permlane32_swap_b32 v{acc[j]}, v{acc[j+4]}")
    for j in range(4): a(f"v_add_f32 v{acc[j]}, v{acc[j]}, v{acc[j+4]}")
    a(f"v_permlane16_swap_b32 v{acc[0]}, v{acc[2]}")
    a(f"v_permlane16_swap_b32 v{acc[1]}, v{acc[3]}")
    a(f"v_add_f32 v{o0}, v{acc[0]}, v{acc[2]}")
    a(f"v_add_f32 v{o1}, v{acc[1]}, v{acc[3]}")
def row_allreduce(op, reg):
    for n in (8, 4, 2, 1):
        a(f"{op}_dpp v{reg}, v{reg}, v{reg} row_ror:{n} {DPPF}")
def wave_reduce_to63(op, reg):
    row_allreduce(op, reg)
    a(f"{op}_dpp v{reg}, v{reg}, v{reg} row_bcast:15 row_mask:0xa bank_mask:0xf")
    a(f"{op}_dpp v{reg}, v{reg}, v{reg} row_bcast:31 row_mask:0xc bank_mask:0xf")
def rb16(dst, src):
    a(f"v_cvt_pk_bf16_f32 v{dst}, 0, v{src}")
def red16(regs):
    for n in (4, 8):
        for r in regs: a(f"v_add_f32_dpp v{r}, v{r}, v{r} row_ror:{n} {DPPF}")
    a(f"v_permlane32_swap_b32 v{regs[0]}, v{regs[2]}")
    a(f"v_permlane32_swap_b32 v{regs[1]}, v{regs[3]}")
    a(f"v_add_f32 v{regs[0]}, v{regs[0]}, v{regs[2]}")
    a(f"v_add_f32 v{regs[1]}, v{regs[1]}, v{regs[3]}")
    a(f"v_permlane16_swap_b32 v{regs[0]}, v{regs[1]}")
    a(f"v_add_f32 v{regs[0]}, v{regs[0]}, v{regs[1]}")
def tag_bad(grans, acc, t):
    first = True
    for g in grans:
        if first:
            a(f"v_xor_b32 v{acc}, s4, v{g+2}")
            a(f"v_xor_b32 v{t}, s5, v{g+3}")
            a(f"v_or_b32 v{acc}, v{acc}, v{t}")
            first = False
        else:
            a(f"v_xor_b32 v{t}, s4, v{g+2}")
            a(f"v_or_b32 v{acc}, v{acc}, v{t}")
            a(f"v_xor_b32 v{t}, s5, v{g+3}")
            a(f"v_or_b32 v{acc}, v{acc}, v{t}")
    a(f"v_cmp_ne_u32 vcc, 0, v{acc}")
def make_tags():
    a("s_add_u32 s4, s6, 1")
    a("s_mul_i32 s5, s4, 0x9e3779b1")
    a("s_xor_b32 s5, s5, 0x5bd1e995")
class Sched:
    def __init__(self): self.issued = []; self.landed = -1
    def issue(self, name): self.issued.append(name)
    def wait(self, name):
        idx = self.issued.index(name)
        if idx > self.landed:
            a(f"s_waitcnt vmcnt({len(self.issued) - 1 - idx})")
            self.landed = idx
def ws_srd():
    a("s_mov_b32 s60, s32")
    a("s_mov_b32 s61, s33")
    a(f"s_mov_b32 s62, {WS_SIZE}")
    a("s_mov_b32 s63, 0x20000")

if DBG: a("s_memrealtime s[90:91]")
a("s_load_dwordx16 s[8:23], s[0:1], 0")
a("s_load_dwordx8 s[24:31], s[0:1], 64")
a("s_load_dwordx2 s[32:33], s[0:1], 96")
a("s_cmp_ge_u32 s2, 256")
a("s_cbranch_scc1 L_end")
a(f"v_and_b32 {VL}, 63, v0")
a(f"v_lshrrev_b32 {VT}, 6, v0")
a(f"v_mov_b32 {VZ}, 0")
a(f"v_readfirstlane_b32 {S_WAVE}, {VT}")
a("v_lshlrev_b32 v124, 4, v0")
if MAP in (0, 1, 3):
    a(f"s_and_b32 {S_H}, s2, 7")
    if MAP == 1: a(f"s_xor_b32 {S_H}, {S_H}, 4")
    if MAP == 3: a(f"s_xor_b32 {S_H}, {S_H}, 2")
    a(f"s_lshl_b32 {S_H}, {S_H}, 2")
    a(f"s_lshr_b32 {S_S}, s2, 3")
    a(f"s_and_b32 {S_S}, {S_S}, 3")
    a(f"s_or_b32 {S_H}, {S_H}, {S_S}")
    a(f"s_lshr_b32 {S_S}, s2, 5")
elif MAP == 2:
    a(f"s_lshr_b32 {S_H}, s2, 3")
    a(f"s_and_b32 {S_S}, s2, 7")
elif MAP == 4:
    a(f"s_and_b32 {S_H}, s2, 7")
    a(f"s_lshr_b32 {S_S}, s2, 3")
    a(f"s_and_b32 {S_S}, {S_S}, 3")
    a(f"s_lshl_b32 {S_S}, {S_S}, 3")
    a(f"s_or_b32 {S_H}, {S_H}, {S_S}")
    a(f"s_lshr_b32 {S_S}, s2, 5")
a(f"s_lshl_b32 {S_P}, {S_H}, 3")
a(f"s_or_b32 {S_P}, {S_P}, {S_S}")
a(f"s_cmp_lg_u32 {S_WAVE}, 8")
a("s_cbranch_scc1 L_noinit")
a(f"v_lshlrev_b32 {VT}, 2, {VL}")
a(f"ds_write_b32 {VT}, {VZ}")
if OADD:
    a(f"ds_write_b32 {VT}, {VZ} offset:{L_OA}")
    a(f"ds_write_b32 {VT}, {VZ} offset:{L_OA+256}")
a("s_waitcnt lgkmcnt(0)")
a.label("L_noinit")
a("s_barrier")
a(f"s_lshl_b32 s38, {S_P}, 18")
a("s_mov_b32 s42, 0x40000")
a("s_mov_b32 s43, 0x20000")
a("s_mov_b32 s46, 0x40000")
a("s_mov_b32 s47, 0x20000")
a(f"s_cmp_ge_u32 {S_WAVE}, 8")
a("s_waitcnt lgkmcnt(0)")
if DIAG: a("s_memrealtime s[80:81]")
a("s_cbranch_scc1 L_svc")
if ROT == 1:
    a("s_mul_i32 s7, s2, 5"); a("s_and_b32 s7, s7, 31"); a("s_lshl_b32 s7, s7, 13")
elif ROT == 2:
    a(f"s_lshl_b32 s7, {S_S}, 15")
elif ROT == 3:
    a("s_mul_i32 s7, s2, 0x9e3779b1"); a("s_lshr_b32 s7, s7, 27"); a("s_lshl_b32 s7, s7, 13")
a("s_add_u32 s40, s10, s38")
a("s_addc_u32 s41, s11, 0")
a("s_add_u32 s44, s12, s38")
a("s_addc_u32 s45, s13, 0")
if PRIO == 1: a("s_setprio 1")
sch = Sched()
NA, NB = 0, 64
def slot(kind, i):
    if kind == "K":
        if i < 16: return 4 * i
        if i < 24: return 32 + 4 * (i - 16)
        return 64 + 4 * (i - 24)
    else:
        if i < 8: return 64 + 4 * i
        if i < 16: return 4 * (i - 8)
        if i < 24: return 4 * (i - 16)
        return 32 + 4 * (i - 24)
order = [("K", i) for i in range(16)] + [("V", i) for i in range(16)] + [("K", i) for i in range(16, 32)] + [("V", i) for i in range(16, 32)]
def issue(n):
    k, i = order[n]
    D = DEPTH0 if n < N1 else (DEPTH if n < N2 else DEPTH2)
    if n >= D: sch.wait("%s%d" % order[n - D])
    d = slot(k, i)
    srd = KSRD if k == "K" else VSRD
    if ROT:
        a(f"s_add_u32 s67, s7, {i*8192}")
        a("s_and_b32 s67, s67, 0x3ffff")
        a(f"buffer_load_dwordx4 v[{d}:{d+3}], v124, {srd}, s67 offen nt")
    elif i == 0:
        a(f"buffer_load_dwordx4 v[{d}:{d+3}], v124, {srd}, 0 offen nt")
    else:
        a(f"s_mov_b32 s67, {i*8192}")
        a(f"buffer_load_dwordx4 v[{d}:{d+3}], v124, {srd}, s67 offen nt")
    sch.issue(f"{k}{i}")
def qk(i):
    sch.wait(f"K{i}")
    d = slot("K", i)
    for j in range(4 if not NOCOMP else 0):
        a(f"v_dot2c_f32_bf16 v{96 + i % 16}, v{d+j}, v{112+j}")
def pv(j):
    sch.wait(f"V{j}")
    d = slot("V", j)
    for t in range(4 if not NOCOMP else 0):
        a(f"v_dot2c_f32_bf16_dpp v{116+2*t}, v110, v{d+t} row_newbcast:{j % 16} {DPPF}")
        a(f"v_dot2c_f32_bf16_dpp v{117+2*t}, v111, v{d+t} row_newbcast:{j % 16} {DPPF}")
def butterfly():
    for i in range(8):
        a(f"v_add_f32_dpp v{96+i}, v{96+i}, v{96+i} row_ror:8 row_mask:0xf bank_mask:0x3")
        a(f"v_add_f32_dpp v{96+i}, v{104+i}, v{104+i} row_ror:8 row_mask:0xf bank_mask:0xc")
    for i in range(4):
        a(f"v_add_f32_dpp v{96+i}, v{96+i}, v{96+i} row_ror:12 row_mask:0xf bank_mask:0x5")
        a(f"v_add_f32_dpp v{96+i}, v{100+i}, v{100+i} row_ror:4 row_mask:0xf bank_mask:0xa")
    for i in range(4):
        a(f"v_add_f32_dpp v{96+i}, v{96+i}, v{96+i} quad_perm:[2,3,0,1] {DPPF}")
    a("v_cndmask_b32 v96, v96, v98, s[68:69]")
    a("v_cndmask_b32 v97, v97, v99, s[68:69]")
    a(f"v_add_f32_dpp v96, v96, v96 quad_perm:[1,0,3,2] {DPPF}")
    a(f"v_add_f32_dpp v97, v97, v97 quad_perm:[1,0,3,2] {DPPF}")
    a("v_cndmask_b32 v96, v96, v97, s[70:71]")
    a("v_mul_f32 v96, s78, v96")
    a("v_mov_b32 v97, v96")
    wave_reduce_to63("v_max_f32", 97)
C = {n: [] for n in range(64)}
def at(n, f): C[n].append(f)
def setup_scalars():
    ws_srd()
    a("s_mov_b32 s68, 0xcccccccc")
    a("s_mov_b32 s69, 0xcccccccc")
    a("s_mov_b32 s70, 0xaaaaaaaa")
    a("s_mov_b32 s71, 0xaaaaaaaa")
    a(f"s_mov_b32 s78, {f2u(SC):#x}")
    a(f"s_load_dword s6, s[32:33], {EPO}")
    a(f"v_and_b32 v121, 15, {VL}")
    a("v_lshlrev_b32 v121, 4, v121")
    for i in range(16): a(f"v_mov_b32 v{96+i}, 0")
at(min(DEPTH, DEPTH0) - 1, setup_scalars)
def qwait():
    if not NOQW: lds_wait_flag(L_FQ)
    a(f"ds_read_b128 v[112:115], v121 offset:{L_Q}")
    stamp(1)
    a("s_waitcnt lgkmcnt(0)")
at(QW, qwait)
qs = QW
for g in range(4):
    for i in range(4 * g, 4 * g + 4): at(qs + g, lambda i=i: qk(i))
def softmax0():
    butterfly()
    a("v_readlane_b32 s72, v97, 63")
    a("v_subrev_f32 v96, s72, v96")
    a("v_exp_f32 v96, v96")
    a("v_cvt_pk_bf16_f32 v110, v96, 0")
    a("v_cvt_pk_bf16_f32 v111, 0, v96")
    a("v_mov_b32 v97, v111")
    wave_reduce_to63("v_add_f32", 97)
    a("v_readlane_b32 s73, v97, 63")
    for j in range(8): a(f"v_mov_b32 v{116+j}, 0")
    make_tags()
    stamp(2)
s0 = qs + 4
at(s0, softmax0)
for j in range(8): at(s0 + 1 + j // 2, lambda j=j: pv(j))
p8 = s0 + 5
pvn = {}
for j in range(8):
    pvn[j] = max(p8 + j // 2, 24 + j + DEPTH)
    at(pvn[j], lambda j=j: pv(8 + j))
nz = pvn[7]
assert s0 + 4 < 40, "PV(V0..7) must finish before K24 issue"
assert nz < 48
def zeroS():
    for i in range(16): a(f"v_mov_b32 v{96+i}, 0")
at(nz, zeroS)
qkn = {}
prev = nz
cnt = 0
for j in range(16):
    n = max(nz, 32 + j + DEPTH)
    while qkn and sum(1 for v in qkn.values() if v == n) >= 3: n += 1
    if qkn: n = max(n, max(qkn.values()))
    while sum(1 for v in qkn.values() if v == n) >= 3: n += 1
    qkn[j] = n
    at(n, lambda j=j: qk(16 + j))
    assert j >= 8 or n < 56 + j, (j, n)
ns = qkn[15]
def softmax1():
    butterfly()
    a("v_readlane_b32 s74, v97, 63")
    a("v_mov_b32 v98, s72")
    a("v_max_f32 v98, s74, v98")
    a("v_sub_f32 v96, v96, v98")
    a("v_sub_f32 v99, s72, v98")
    a("v_exp_f32 v96, v96")
    a("v_exp_f32 v99, v99")
    a("v_readfirstlane_b32 s72, v98")
    a("v_cvt_pk_bf16_f32 v110, v96, 0")
    a("v_cvt_pk_bf16_f32 v111, 0, v96")
    for j in range(8): a(f"v_mul_f32 v{116+j}, v99, v{116+j}")
    a("s_mov_b64 exec, 1")
    a(f"s_lshl_b32 s38, {S_WAVE}, 2")
    a("v_mov_b32 v97, s38")
    a(f"ds_write_b32 v97, v98 offset:{L_M}")
    a("v_mov_b32 v98, 1")
    a(f"ds_add_u32 {VZ}, v98 offset:{L_MC}")
    a("s_mov_b64 exec, -1")
    a("v_mov_b32 v97, v111")
    wave_reduce_to63("v_add_f32", 97)
    a("v_mul_f32 v99, s73, v99")
    a("v_readlane_b32 s73, v97, 63")
    a("v_add_f32 v102, s73, v99")
    stamp(3)
at(ns, softmax1)
done = 16
for n in range(ns + 1, 64):
    k = 0
    while done < 32 and k < 2 and (48 + (done - 16) + DEPTH2) <= n:
        at(n, lambda j=done: pv(j)); done += 1; k += 1
for j in range(8): assert qs + j // 4 < 24 + j
for j in range(8): assert qs + (8 + j) // 4 < 32 + j
for j in range(8): assert pvn[j] < 48 + j
for n in range(64):
    issue(n)
    for f in C[n]: f()
lds_wait_flag(L_MC, "s_cmp_ge_u32", "8", sleep=1)
a(f"v_and_b32 v99, 7, {VL}")
a("v_lshlrev_b32 v99, 2, v99")
a(f"ds_read_b32 v100, v99 offset:{L_M}")
a(f"v_lshrrev_b32 v98, 4, {VL}")
a(f"v_and_b32 v103, 15, {VL}")
a("v_lshlrev_b32 v103, 5, v103")
a("v_lshl_add_u32 v103, v98, 3, v103")
a(f"s_mul_i32 s38, {S_WAVE}, {OPS}")
a("v_add_u32 v104, s38, v103")
a("s_waitcnt lgkmcnt(0)")
a(f"v_max_f32_dpp v100, v100, v100 quad_perm:[1,0,3,2] {DPPF}")
a(f"v_max_f32_dpp v100, v100, v100 quad_perm:[2,3,0,1] {DPPF}")
a(f"v_max_f32_dpp v100, v100, v100 row_half_mirror {DPPF}")
a("v_sub_f32 v101, s72, v100")
a("v_exp_f32 v101, v101")
a(f"s_lshl_b32 s38, {S_WAVE}, 2")
a("v_mov_b32 v99, s38")
a("v_mul_f32 v102, v102, v101")
a("s_mov_b64 exec, 1")
a(f"ds_write_b32 v99, v102 offset:{L_L}")
if MLE:
    a("v_mov_b32 v99, 1")
    a(f"ds_add_u32 {VZ}, v99 offset:{L_LC}")
a("s_mov_b64 exec, -1")
for j in range(done, 32): pv(j)
stamp(4)
rowreduce8(list(range(116, 124)), 116, 117)
a("v_mul_f32 v116, v101, v116")
a("v_mul_f32 v117, v101, v117")
if OADD:
    a(f"ds_add_f32 v103, v116 offset:{L_OA}")
    a(f"ds_add_f32 v103, v117 offset:{L_OA+4}")
else:
    a(f"ds_write_b64 v104, v[116:117] offset:{L_OP}")
a.label("L_barA")
if not OADD:
    a(f"v_and_b32 v106, 7, {VL}")
    a(f"v_mul_u32_u24 v106, {OPS}, v106")
    a(f"v_bfe_u32 v107, {VL}, 3, 2")
    a("v_lshl_add_u32 v106, v107, 3, v106")
    a(f"s_lshl_b32 s38, {S_WAVE}, 5")
    a("v_add_u32 v106, s38, v106")
    a(f"s_lshl_b32 s38, {S_WAVE}, 4")
    a("v_lshl_add_u32 v107, v107, 2, s38")
    a("s_mov_b32 s38, 0x01010101")
    a("s_mov_b32 s39, 0")
a("s_waitcnt lgkmcnt(0)")
stamp(5)
a("s_barrier")
if not OADD:
    a(f"ds_read_b64 v[108:109], v106 offset:{L_OP}")
    a("s_waitcnt lgkmcnt(0)")
    for m in ("quad_perm:[1,0,3,2]", "quad_perm:[2,3,0,1]", "row_half_mirror"):
        a(f"v_add_f32_dpp v108, v108, v108 {m} {DPPF}")
        a(f"v_add_f32_dpp v109, v109, v109 {m} {DPPF}")
    a("v_cvt_pk_bf16_f32 v108, v108, v109")
    a("s_mov_b64 exec, s[38:39]")
    a(f"ds_write_b32 v107, v108 offset:{L_OPK}")
    a("s_mov_b64 exec, -1")
    a("s_waitcnt lgkmcnt(0)")
    a("s_barrier")
a(f"s_cmp_ge_u32 {S_WAVE}, 8")
a("s_cbranch_scc1 L_yphase")
if not MLE:
    a(f"s_cmp_lg_u32 {S_WAVE}, 0")
    a("s_cbranch_scc1 L_pubdone")
    a(f"v_and_b32 v99, 7, {VL}")
    a("v_lshlrev_b32 v99, 2, v99")
    a(f"ds_read_b32 v1, v99 offset:{L_L}")
    a("v_mov_b32 v2, s4")
    a("v_mov_b32 v3, s5")
    a("v_mov_b32 v0, v100")
    a("s_waitcnt lgkmcnt(0)")
    for m in ("quad_perm:[1,0,3,2]", "quad_perm:[2,3,0,1]", "row_half_mirror"):
        a(f"v_add_f32_dpp v1, v1, v1 {m} {DPPF}")
    a(f"s_lshl_b32 s38, {S_P}, 4")
    a(f"s_add_u32 s38, s38, {MLB}")
    a("s_mov_b64 exec, 1")
    a(f"buffer_store_dwordx4 v[0:3], {VZ}, {WSRD}, s38 offen sc1")
    a("s_mov_b64 exec, -1")
a("s_branch L_pubdone")
a.label("L_yphase")
if OADD:
    for q in range(4): a(f"ds_read_b128 v[{100+4*q}:{103+4*q}], v93 offset:{L_OA+16*q}")
    for q in range(4):
        a(f"s_waitcnt lgkmcnt({3-q})")
        a(f"v_cvt_pk_bf16_f32 v{72+2*q}, v{100+4*q}, v{101+4*q}")
        a(f"v_cvt_pk_bf16_f32 v{73+2*q}, v{102+4*q}, v{103+4*q}")
else:
    a(f"ds_read_b128 v[72:75], v105 offset:{L_OPK}")
    a(f"ds_read_b128 v[76:79], v105 offset:{L_OPK+16}")
    a("s_waitcnt lgkmcnt(0)")
PMAP = {}
spare = 64
for k in range(8):
    A_, B_ = 8 * k, 8 * k + 4
    PMAP[k] = (spare, B_)
    spare = A_
for k in range(8):
    lo, hi = PMAP[k]
    for j in range(4):
        a(f"v_dot2c_f32_bf16 v{80+2*j}, v{72+k}, v{lo+j}")
        a(f"v_dot2c_f32_bf16 v{81+2*j}, v{72+k}, v{hi+j}")
rowreduce8(list(range(80, 88)), 88, 89)
a(f"v_add_f32_dpp v88, v88, v88 row_ror:8 {DPPF}")
a(f"v_add_f32_dpp v89, v89, v89 row_ror:8 {DPPF}")
a(f"buffer_store_dwordx4 v[88:91], v92, {WSRD}, s79 offen sc1")
stamp(6)
a.label("L_pubdone")
a("s_cmp_ge_u32 s2, 0" if NORED else "s_cmp_ge_u32 s2, 32")
a("s_cbranch_scc1 L_fin")
a(f"s_lshl_b32 s38, {S_WAVE}, 6")
a(f"v_add_u32 v99, s38, {VL}")
a("v_lshlrev_b32 v98, 5, v99")
a("v_lshrrev_b32 v97, 2, v99")
a("v_lshlrev_b32 v97, 4, v97")
a("s_lshl_b32 s38, s2, 14")
a(f"s_add_u32 s38, s38, {YBB}")
a("s_add_u32 s52, s32, s38")
a("s_addc_u32 s53, s33, 0")
a(f"s_mov_b32 s54, {86*128}")
a("s_mov_b32 s55, 0x20000")
a("s_lshl_b32 s38, s2, 15")
a(f"s_add_u32 s38, s38, {YMB}")
a(f"s_mov_b32 s39, {MLB}")
a(f"ds_read_b64 v[24:25], {VZ} offset:{L_G}")
a("s_mov_b32 s79, 0x158")
a("v_cmp_gt_u32 s[72:73], s79, v99")
a(f"s_mov_b32 s75, {TMO_MEM}")
a.label("L_mlpoll")
a(f"buffer_load_dwordx4 v[8:11], v97, {WSRD}, s39 offen sc1")
a(f"buffer_load_dwordx4 v[12:15], v98, {TSRD}, 0 offen sc1")
a(f"buffer_load_dwordx4 v[16:19], v98, {TSRD}, 0 offen offset:16 sc1")
a("s_waitcnt vmcnt(0)")
tag_bad([12, 16], 20, 21)
a("s_and_b64 s[76:77], vcc, s[72:73]")
tag_bad([8], 20, 21)
a("s_or_b64 s[76:77], s[76:77], vcc")
a("s_cmp_eq_u64 s[76:77], 0")
a("s_cbranch_scc1 L_mlok")
timeout_check()
a("s_sleep 2")
a.label("L_mlpoll2")
a(f"buffer_load_dwordx4 v[8:11], v97, {WSRD}, s39 offen sc1")
a("s_waitcnt vmcnt(0)")
tag_bad([8], 20, 21)
a("s_cbranch_vccnz L_mlretry")
a("s_branch L_mlpoll")
a.label("L_mlretry")
timeout_check()
a("s_sleep 2")
a("s_branch L_mlpoll2")
a.label("L_mlok")
def ldy(base):
    a(f"buffer_load_dwordx4 v[{base}:{base+3}], v98, {WSRD}, s38 offen sc1")
    a(f"buffer_load_dwordx4 v[{base+4}:{base+7}], v98, {WSRD}, s38 offen offset:16 sc1")
ldy(0)
a("v_mov_b32 v26, v8")
a(f"v_max_f32_dpp v26, v26, v26 row_ror:4 {DPPF}")
a(f"v_max_f32_dpp v26, v26, v26 row_ror:8 {DPPF}")
a("v_mov_b32 v27, v26")
a("v_permlane16_swap_b32 v26, v27")
a("v_max_f32 v26, v26, v27")
a("v_sub_f32 v26, v8, v26")
a("v_exp_f32 v26, v26")
a("v_mul_f32 v28, v26, v9")
a(f"v_add_f32_dpp v28, v28, v28 row_ror:4 {DPPF}")
a(f"v_add_f32_dpp v28, v28, v28 row_ror:8 {DPPF}")
a("v_mov_b32 v27, v28")
a("v_permlane16_swap_b32 v28, v27")
a("v_add_f32 v28, v28, v27")
a("v_rcp_f32 v28, v28")
a("s_waitcnt lgkmcnt(0)")
a("v_mul_f32 v26, v26, v24")
a("v_mul_f32 v26, v26, v28")
a("v_mul_f32 v12, v25, v12")
a("v_mul_f32 v13, v25, v13")
a("v_mul_f32 v16, v25, v16")
a("v_mul_f32 v17, v25, v17")
a(f"v_and_b32 v46, 3, {VL}")
a("v_lshlrev_b32 v46, 4, v46")
a(f"v_lshrrev_b32 v47, 4, {VL}")
a("v_lshl_add_u32 v46, v47, 2, v46")
a(f"s_lshl_b32 s79, {S_WAVE}, 6")
a("v_add_u32 v47, s79, v46")
if SINGLE:
    a.label("L_rpoll")
    a("s_waitcnt vmcnt(0)")
    tag_bad([0, 4], 20, 21)
    a("s_cbranch_vccz L_rokA")
    if YSL: a(f"s_sleep {YSL}")
    ldy(0)
    timeout_check()
    a("s_branch L_rpoll")
else:
    if STAG: a(f"s_sleep {STAG}")
    ldy(32)
    a.label("L_rpoll")
    a("s_waitcnt vmcnt(2)")
    tag_bad([0, 4], 20, 21)
    a("s_cbranch_vccz L_rokA")
    ldy(0)
    a("s_waitcnt vmcnt(2)")
    tag_bad([32, 36], 20, 21)
    a("s_cbranch_vccz L_rokB")
    ldy(32)
    timeout_check()
    a("s_branch L_rpoll")
a.label("L_rokB")
a("v_fma_f32 v40, v26, v32, v12")
a("v_fma_f32 v41, v26, v33, v13")
a("v_fma_f32 v42, v26, v36, v16")
a("v_fma_f32 v43, v26, v37, v17")
a("s_branch L_rok")
a.label("L_rokA")
a("v_fma_f32 v40, v26, v0, v12")
a("v_fma_f32 v41, v26, v1, v13")
a("v_fma_f32 v42, v26, v4, v16")
a("v_fma_f32 v43, v26, v5, v17")
a.label("L_rok")
stamp(7)
red16([40, 41, 42, 43])
a("s_mov_b32 s38, 0x000f000f")
a("s_mov_b32 s39, 0x000f000f")
a("s_mov_b64 exec, s[38:39]")
a(f"ds_write_b32 v47, v40 offset:{L_RED}")
a("s_mov_b64 exec, -1")
a("s_waitcnt lgkmcnt(0)")
a("s_barrier")
a(f"s_cmp_lg_u32 {S_WAVE}, 0")
a("s_cbranch_scc1 L_fin")
a(f"v_lshlrev_b32 v47, 4, {VL}")
a(f"ds_read_b128 v[40:43], v47 offset:{L_RED}")
a("v_lshrrev_b32 v46, 1, v46")
a("s_lshl_b32 s79, s2, 5")
a("s_mov_b32 s52, s28")
a("s_mov_b32 s53, s29")
a("s_mov_b32 s54, 1024")
a("s_mov_b32 s55, 0x20000")
a("v_mov_b32 v44, s4")
a("s_waitcnt lgkmcnt(0)")
red16([40, 41, 42, 43])
a("v_cvt_pk_bf16_f32 v40, v40, 0")
a("s_mov_b64 exec, s[38:39]")
a(f"buffer_store_short v40, v46, {TSRD}, s79 offen")
a("s_cmp_lg_u32 s2, 0")
a("s_cbranch_scc1 L_fin")
a("s_mov_b64 exec, 1")
a(f"s_mov_b32 s38, {EPO}")
a(f"buffer_store_dword v44, {VZ}, {WSRD}, s38 offen sc1")
a.label("L_fin")
a("s_mov_b64 exec, -1")
if DIAG:
    a("s_memrealtime s[96:97]")
    a("s_waitcnt vmcnt(0) lgkmcnt(0)")
    for k in range(11): a(f"v_mov_b32 v{k}, s{80+2*k}")
    a("s_getreg_b32 s38, hwreg(HW_REG_XCC_ID)")
    a("v_mov_b32 v11, s38")
    a("s_lshl_b32 s38, s2, 4")
    a(f"s_add_u32 s38, s38, {S_WAVE}")
    a("s_lshl_b32 s38, s38, 6")
    a(f"s_add_u32 s38, s38, {DIAGO}")
    a("s_mov_b64 exec, 1")
    a(f"buffer_store_dwordx4 v[0:3], {VZ}, {WSRD}, s38 offen")
    a(f"buffer_store_dwordx4 v[4:7], {VZ}, {WSRD}, s38 offen offset:16")
    a(f"buffer_store_dwordx4 v[8:11], {VZ}, {WSRD}, s38 offen offset:32")
if DBG:
    a("s_cmp_ge_u32 s2, 8")
    a("s_cbranch_scc1 L_end")
    a(f"s_cmp_lg_u32 {S_WAVE}, 0")
    a("s_cbranch_scc1 L_end")
    a("s_memrealtime s[92:93]")
    a("s_waitcnt lgkmcnt(0)")
    a("v_mov_b32 v0, s90")
    a("v_mov_b32 v1, s92")
    a("s_mov_b32 s52, s30")
    a("s_mov_b32 s53, s31")
    a("s_mov_b32 s54, 256")
    a("s_mov_b32 s55, 0x20000")
    a("s_lshl_b32 s38, s2, 3")
    a("s_mov_b64 exec, 1")
    a(f"buffer_store_dwordx2 v[0:1], {VZ}, {TSRD}, s38 offen")
a.label("L_end")
a("s_endpgm")

a.label("L_svc")
if PRIO == 2:
    a(f"s_cmp_lg_u32 {S_WAVE}, 8")
    a("s_cbranch_scc1 L_noprio")
    a("s_setprio 2")
    a.label("L_noprio")
ws_srd()
if NOSVC:
    a("s_mov_b32 s79, 0x7fffffff")
    a("v_mov_b32 v104, 0")
    a("v_mov_b32 v105, 0")
    a("s_branch L_barA")
a(f"s_load_dword s6, s[32:33], {EPO}")
if TOUCH:
    a(f"s_cmp_lg_u32 {S_WAVE}, 15")
    a("s_cbranch_scc1 L_notouch")
    a(f"s_lshl_b32 s38, {S_P}, 18")
    a("s_add_u32 s44, s12, s38")
    a("s_addc_u32 s45, s13, 0")
    a(f"s_lshl_b32 s38, {S_H}, 17")
    a("s_add_u32 s48, s16, s38")
    a("s_addc_u32 s49, s17, 0")
    a("s_mov_b32 s50, 0x20000")
    a("s_mov_b32 s51, 0x20000")
    a("s_mov_b64 exec, 1")
    a(f"buffer_load_dword v0, {VZ}, {VSRD}, 0 offen nt")
    a(f"buffer_load_dword v1, {VZ}, {WOSRD}, 0 offen nt")
    a(f"s_mov_b32 s38, {YMB}")
    a(f"buffer_load_dword v2, {VZ}, {WSRD}, s38 offen sc1")
    a("s_mov_b32 s52, s28")
    a("s_mov_b32 s53, s29")
    a("s_mov_b32 s54, 1024")
    a("s_mov_b32 s55, 0x20000")
    a(f"buffer_load_dword v3, {VZ}, {TSRD}, 0 offen")
    a("s_mov_b64 exec, -1")
    a.label("L_notouch")
a(f"s_cmp_eq_u32 {S_WAVE}, 9")
a("s_cbranch_scc1 L_b1")
a(f"s_cmp_eq_u32 {S_WAVE}, 10")
a("s_cbranch_scc1 L_b2")
a(f"s_cmp_eq_u32 {S_WAVE}, 11")
a("s_cbranch_scc1 L_gate")
a(f"s_cmp_lg_u32 {S_WAVE}, 8")
a("s_cbranch_scc1 L_wo")
a(f"s_lshl_b32 s38, {S_S}, 19")
a(f"s_lshl_b32 s39, {S_H}, 8")
a("s_add_u32 s38, s38, s39")
a("s_add_u32 s52, s14, s38")
a("s_addc_u32 s53, s15, 0")
a("s_sub_u32 s54, 0x400000, s38")
a("s_mov_b32 s55, 0x20000")
a(f"v_lshrrev_b32 v122, 4, {VL}")
a(f"v_and_b32 v121, 15, {VL}")
a("v_lshlrev_b32 v120, 17, v122")
a("v_lshl_add_u32 v120, v121, 4, v120")
a("v_lshlrev_b32 v119, 5, v122")
a(f"s_lshl_b32 s38, {S_S}, 7")
a("v_add_u32 v119, s38, v119")
a("global_load_dwordx4 v[64:67], v119, s[8:9]")
a("global_load_dwordx4 v[68:71], v119, s[8:9] offset:16")
for i in range(16 if not NOWQ else 0):
    a(f"buffer_load_dwordx4 v[{4*i}:{4*i+3}], v120, {TSRD}, 0 offen nt")
    if i < 15: a("v_add_u32 v120, 0x2000, v120")
for j in range(8): a(f"v_mov_b32 v{104+j}, 0")
a("s_waitcnt vmcnt(16)")
for k in range(8):
    a(f"v_and_b32 v{72+4*k}, 0xffff, v{64+k}")
    a(f"v_lshlrev_b32 v{73+4*k}, 16, v{64+k}")
    a(f"v_lshrrev_b32 v{74+4*k}, 16, v{64+k}")
    a(f"v_and_b32 v{75+4*k}, 0xffff0000, v{64+k}")
for i in range(16):
    a(f"s_waitcnt vmcnt({15 - i})")
    for j in range(4):
        a(f"v_dot2c_f32_bf16 v{104+2*j}, v{72+2*i}, v{4*i+j}")
        a(f"v_dot2c_f32_bf16 v{105+2*j}, v{73+2*i}, v{4*i+j}")
rowreduce8(list(range(104, 112)), 104, 105)
a("s_waitcnt lgkmcnt(0)")
make_tags()
a("v_mov_b32 v106, s4")
a("v_mov_b32 v107, s5")
a("v_lshlrev_b32 v119, 6, v121")
a("v_lshl_add_u32 v119, v122, 4, v119")
a(f"s_lshl_b32 s79, {S_P}, 10")
a(f"buffer_store_dwordx4 v[104:107], v119, {WSRD}, s79 offen sc1")
stamp(9)
if QACK: a("s_waitcnt vmcnt(0)")
a(f"v_lshlrev_b32 v119, 4, {VL}")
a(f"s_lshl_b32 s79, {S_H}, 13")
a("s_add_u32 s38, s79, 4096")
a(f"s_mov_b32 s75, {TMO_MEM}")
a.label("L_qpoll")
if NOQP: a("s_branch L_qok")
for i in range(8):
    so = "s79" if i < 4 else "s38"
    a(f"buffer_load_dwordx4 v[{4*i}:{4*i+3}], v119, {WSRD}, {so} offen offset:{1024*(i%4)} sc1")
a("s_waitcnt vmcnt(0)")
tag_bad([4*i for i in range(8)], 32, 33)
a("s_cbranch_vccz L_qok")
timeout_check()
a("s_branch L_qpoll")
a.label("L_qok")
for j in range(2):
    a(f"v_add_f32 v{j}, v{j}, v{4+j}")
    a(f"v_add_f32 v{8+j}, v{8+j}, v{12+j}")
    a(f"v_add_f32 v{16+j}, v{16+j}, v{20+j}")
    a(f"v_add_f32 v{24+j}, v{24+j}, v{28+j}")
for j in range(2):
    a(f"v_add_f32 v{j}, v{j}, v{8+j}")
    a(f"v_add_f32 v{16+j}, v{16+j}, v{24+j}")
for j in range(2): a(f"v_add_f32 v{j}, v{j}, v{16+j}")
a("v_cvt_pk_bf16_f32 v0, v0, v1")
a(f"v_lshlrev_b32 v119, 2, {VL}")
a(f"ds_write_b32 v119, v0 offset:{L_Q}")
a("s_waitcnt lgkmcnt(0)")
lds_set_flag(L_FQ)
stamp(10)
a("s_branch L_wo2")

a.label("L_b1")
if NOB1: a("s_branch L_wo")
a("s_cmp_ge_u32 s2, 172")
a("s_cbranch_scc1 L_wo")
a("s_and_b32 s38, s2, 3")
a(f"s_mul_i32 s39, s38, {64*5504}")
a("s_lshr_b32 s79, s2, 2")
a("s_lshl_b32 s74, s79, 7")
a("s_add_u32 s39, s39, s74")
a("s_add_u32 s52, s20, s39")
a("s_addc_u32 s53, s21, 0")
a(f"s_sub_u32 s54, {512*2752}, s39")
a("s_mov_b32 s55, 0x20000")
a("s_add_u32 s48, s22, s39")
a("s_addc_u32 s49, s23, 0")
a("s_mov_b32 s50, s54")
a("s_mov_b32 s51, 0x20000")
a(f"v_lshrrev_b32 v122, 3, {VL}")
a(f"v_and_b32 v121, 7, {VL}")
a(f"v_mul_u32_u24 v120, {8*5504}, v122")
a("v_lshl_add_u32 v120, v121, 4, v120")
a("v_lshlrev_b32 v119, 5, v122")
a("s_lshl_b32 s38, s38, 8")
a("v_add_u32 v119, s38, v119")
a("global_load_dwordx4 v[64:67], v119, s[8:9]")
a("global_load_dwordx4 v[68:71], v119, s[8:9] offset:16")
a("s_lshl_b32 s74, s79, 6")
a("v_lshl_add_u32 v118, v121, 3, s74")
a("s_movk_i32 s74, 1375")
a("v_cmp_lt_u32 vcc, s74, v118")
a("v_cndmask_b32 v118, 0, 16, vcc")
nl = 0
for i in range(8):
    for srd, base in ((TSRD, 0), (WOSRD, 32)):
        if nl >= BD: a(f"s_waitcnt vmcnt({BD-1})")
        a(f"buffer_load_dwordx4 v[{base+4*i}:{base+4*i+3}], v120, {srd}, 0 offen nt"); nl += 1
    if i < 7: a("v_add_u32 v120, 5504, v120")
for j in range(16): a(f"v_mov_b32 v{96+j}, 0")
a("s_waitcnt vmcnt(0)")
for i in range(8):
    a(f"v_lshrrev_b32 v117, v118, v{64+i}")
    a(f"v_and_b32 v{72+2*i}, 0xffff, v117")
    a(f"v_lshlrev_b32 v{73+2*i}, 16, v117")
for i in range(8):
    for j in range(4):
        a(f"v_dot2c_f32_bf16 v{96+2*j}, v{72+2*i}, v{4*i+j}")
        a(f"v_dot2c_f32_bf16 v{97+2*j}, v{73+2*i}, v{4*i+j}")
        a(f"v_dot2c_f32_bf16 v{104+2*j}, v{72+2*i}, v{32+4*i+j}")
        a(f"v_dot2c_f32_bf16 v{105+2*j}, v{73+2*i}, v{32+4*i+j}")
for b in (96, 104):
    for j in range(4): a(f"v_permlane32_swap_b32 v{b+j}, v{b+4+j}")
for b in (96, 104):
    for j in range(4): a(f"v_add_f32 v{b+j}, v{b+j}, v{b+4+j}")
for b in (96, 104):
    for j in range(2): a(f"v_permlane16_swap_b32 v{b+j}, v{b+2+j}")
for b in (96, 104):
    for j in range(2): a(f"v_add_f32 v{b+j}, v{b+j}, v{b+2+j}")
for b in (96, 104):
    a(f"v_add_f32_dpp v{b}, v{b}, v{b} row_ror:8 row_mask:0xf bank_mask:0x3")
    a(f"v_add_f32_dpp v{b}, v{b+1}, v{b+1} row_ror:8 row_mask:0xf bank_mask:0xc")
a("s_waitcnt lgkmcnt(0)")
make_tags()
a("v_mov_b32 v97, v104")
a("v_mov_b32 v98, s4")
a("v_mov_b32 v99, s5")
a(f"v_bfe_u32 v100, {VL}, 5, 1")
a("v_lshlrev_b32 v100, 2, v100")
a(f"v_bfe_u32 v101, {VL}, 4, 1")
a("v_lshl_add_u32 v100, v101, 1, v100")
a(f"v_bfe_u32 v101, {VL}, 3, 1")
a("v_add_u32 v100, v100, v101")
a("v_lshl_add_u32 v100, v121, 3, v100")
a("v_lshlrev_b32 v100, 4, v100")
a("s_lshl_b32 s79, s2, 10")
a(f"s_add_u32 s79, s79, {BMB}")
a(f"buffer_store_dwordx4 v[96:99], v100, {WSRD}, s79 offen sc1")
stamp(9)
a("s_branch L_wo")

a.label("L_b2")
if NOB2: a("s_branch L_wo")
a("s_cmp_lt_u32 s2, 170")
a("s_cbranch_scc1 L_wo")
a("s_sub_u32 s79, s2, 170")
a("s_lshl_b32 s38, s79, 14")
a("s_add_u32 s52, s24, s38")
a("s_addc_u32 s53, s25, 0")
a("s_mov_b32 s54, 16384")
a("s_mov_b32 s55, 0x20000")
a(f"v_lshlrev_b32 v102, 4, {VL}")
for i in range(16):
    if i >= BD: a(f"s_waitcnt vmcnt({BD-1})")
    a(f"s_mov_b32 s67, {i*1024}")
    a(f"buffer_load_dwordx4 v[{4*i}:{4*i+3}], v102, {TSRD}, s67 offen nt")
a(f"v_and_b32 v114, 15, {VL}")
a("s_lshl_b32 s38, s79, 4")
a("v_add_u32 v114, s38, v114")
a("v_add_u32 v115, 1376, v114")
a(f"v_lshrrev_b32 v103, 4, {VL}")
a("v_lshlrev_b32 v103, 10, v103")
for r, d in ((114, 116), (115, 117)):
    a(f"v_lshrrev_b32 v{d}, 6, v{r}")
    a(f"v_lshlrev_b32 v{d}, 12, v{d}")
    a(f"v_and_b32 v{r}, 63, v{r}")
    a(f"v_lshl_add_u32 v{d}, v{r}, 4, v{d}")
    a(f"v_add_u32 v{d}, v{d}, v103")
lds_wait_flag(L_FQ, sleep=8)
a(f"s_mov_b32 s38, {BMB}")
make_tags()
a(f"s_mov_b32 s75, {TMO_MEM}")
a.label("L_bpoll")
if NOB1: a("s_branch L_bok")
a(f"buffer_load_dwordx4 v[104:107], v116, {WSRD}, s38 offen sc1")
a(f"buffer_load_dwordx4 v[108:111], v117, {WSRD}, s38 offen sc1")
a("s_waitcnt vmcnt(0)")
tag_bad([104, 108], 100, 101)
a("s_cbranch_vccz L_bok")
timeout_check()
a("s_sleep 8")
a("s_branch L_bpoll")
a.label("L_bok")
a("v_add_f32 v112, v104, v108")
a("v_add_f32 v113, v105, v109")
for r in (112, 113):
    a(f"v_mov_b32 v100, v{r}")
    a(f"v_permlane16_swap_b32 v{r}, v100")
    a(f"v_add_f32 v{r}, v{r}, v100")
    a(f"v_mov_b32 v100, v{r}")
    a(f"v_permlane32_swap_b32 v{r}, v100")
    a(f"v_add_f32 v{r}, v{r}, v100")
rb16(112, 112)
rb16(113, 113)
a("v_mul_f32 v114, v112, v113")
a("v_cvt_pk_bf16_f32 v112, v114, 0")
a("v_cvt_pk_bf16_f32 v113, 0, v114")
for j in range(8): a(f"v_mov_b32 v{96+j}, 0")
for i in range(16):
    for j in range(4):
        a(f"v_dot2c_f32_bf16_dpp v{96+2*j}, v112, v{4*i+j} row_newbcast:{i} {DPPF}")
        a(f"v_dot2c_f32_bf16_dpp v{97+2*j}, v113, v{4*i+j} row_newbcast:{i} {DPPF}")
a(f"v_lshlrev_b32 v114, 5, {VL}")
a(f"ds_write_b128 v114, v[96:99] offset:{L_YT}")
a(f"ds_write_b128 v114, v[100:103] offset:{L_YT+16}")
a(f"v_lshlrev_b32 v114, 3, {VL}")
a("s_waitcnt lgkmcnt(0)")
for k in range(4):
    a(f"ds_read_b64 v[{96+4*k}:{97+4*k}], v114 offset:{L_YT + 512*k}")
for k in range(4):
    a(f"v_mov_b32 v{98+4*k}, s4")
    a(f"v_mov_b32 v{99+4*k}, s5")
a(f"v_lshrrev_b32 v114, 3, {VL}")
a("v_lshlrev_b32 v114, 14, v114")
a(f"v_and_b32 v115, 7, {VL}")
a("v_lshl_add_u32 v114, v115, 4, v114")
a("s_lshl_b32 s38, s79, 7")
a(f"s_add_u32 s38, s38, {YBB}")
a("s_waitcnt lgkmcnt(0)")
for k in range(4):
    a(f"buffer_store_dwordx4 v[{96+4*k}:{99+4*k}], v114, {WSRD}, s38 offen sc1")
    if k < 3: a("s_add_u32 s38, s38, 0x20000")
stamp(9)
a("s_branch L_wo")

a.label("L_gate")
a("s_cmp_ge_u32 s2, 32")
a("s_cbranch_scc1 L_wo")
a(f"v_lshlrev_b32 v102, 4, {VL}")
a("global_load_dwordx4 v[8:11], v102, s[8:9]")
a("global_load_dwordx4 v[12:15], v102, s[26:27]")
a("v_mov_b32 v16, 0")
a("s_mov_b32 s38, 0x3f803f80")
a("s_waitcnt vmcnt(0)")
for j in range(4):
    a(f"v_lshlrev_b32 v17, 16, v{8+j}")
    a(f"v_lshlrev_b32 v18, 16, v{12+j}")
    a(f"v_and_b32 v19, 0xffff0000, v{8+j}")
    a(f"v_and_b32 v20, 0xffff0000, v{12+j}")
    a("v_mul_f32 v17, v17, v18")
    a("v_mul_f32 v19, v19, v20")
    a("v_cvt_pk_bf16_f32 v17, v17, v19")
    a("v_dot2c_f32_bf16 v16, s38, v17")
wave_reduce_to63("v_add_f32", 16)
a("v_readlane_b32 s38, v16, 63")
a("v_mov_b32 v16, s38")
rb16(16, 16)
a(f"v_mul_f32 v16, {f2u(-1.4426950408889634):#x}, v16")
a("v_exp_f32 v16, v16")
a("v_add_f32 v16, 1.0, v16")
a("v_rcp_f32 v16, v16")
rb16(16, 16)
a("v_sub_f32 v17, 1.0, v16")
rb16(17, 17)
a("s_mov_b64 exec, 1")
a(f"ds_write_b64 {VZ}, v[16:17] offset:{L_G}")
a("s_mov_b64 exec, -1")
a.label("L_wo")
lds_wait_flag(L_FQ, sleep=8)
a.label("L_wo2")
a(f"s_lshl_b32 s38, {S_H}, 17")
a("s_add_u32 s48, s16, s38")
a("s_addc_u32 s49, s17, 0")
a("s_mov_b32 s50, 0x20000")
a("s_mov_b32 s51, 0x20000")
a("s_mov_b32 s76, 0x05040100")
a("s_mov_b32 s77, 0x07060302")
a(f"v_lshrrev_b32 v122, 3, {VL}")
a(f"v_and_b32 v121, 7, {VL}")
a("v_lshlrev_b32 v120, 14, v122")
a("v_lshl_add_u32 v120, v121, 4, v120")
a(f"s_sub_u32 s74, {S_WAVE}, 8")
a("s_lshl_b32 s38, s74, 7")
a("v_add_u32 v120, s38, v120")
sw = Sched()
for i in range(16):
    if i >= WOD and not NOWO: sw.wait(f"W{i-WOD}")
    a(f"s_mov_b32 s67, {i*1024}")
    if not NOWO: a(f"buffer_load_dwordx4 v[{4*i}:{4*i+3}], v120, {WOSRD}, s67 offen nt")
    sw.issue(f"W{i}")
a("v_lshlrev_b32 v105, 5, v122")
a("v_lshlrev_b32 v93, 6, v122")
a(f"v_bfe_u32 v100, {VL}, 5, 1")
a("v_lshlrev_b32 v100, 1, v100")
a(f"v_bfe_u32 v101, {VL}, 4, 1")
a("v_add_u32 v100, v100, v101")
a("v_lshl_add_u32 v100, v121, 2, v100")
a("v_lshrrev_b32 v101, 3, v100")
a("v_lshlrev_b32 v101, 15, v101")
a("v_and_b32 v100, 7, v100")
a("v_lshl_add_u32 v92, v100, 4, v101")
a(f"v_bfe_u32 v101, {VL}, 3, 1")
a("v_lshl_or_b32 v92, v101, 31, v92")
a("s_lshl_b32 s38, s74, 17")
a(f"s_lshl_b32 s79, {S_P}, 7")
a("s_add_u32 s79, s79, s38")
a(f"s_add_u32 s79, s79, {YMB}")
a("s_waitcnt lgkmcnt(0)")
make_tags()
a("v_mov_b32 v90, s4")
a("v_mov_b32 v91, s5")
for k in range(8):
    sw.wait(f"W{2*k+1}")
    lo, hi = PMAP[k]
    A_, B_ = 8 * k, 8 * k + 4
    for j in range(4): a(f"v_perm_b32 v{lo+j}, v{B_+j}, v{A_+j}, s76")
    for j in range(4): a(f"v_perm_b32 v{hi+j}, v{B_+j}, v{A_+j}, s77")
for j in range(80, 88): a(f"v_mov_b32 v{j}, 0")
stamp(4)
if MLE:
    a(f"s_cmp_lg_u32 {S_WAVE}, 12")
    a("s_cbranch_scc1 L_barA")
    lds_wait_flag(L_LC, "s_cmp_ge_u32", "8", sleep=2)
    a(f"v_and_b32 v99, 7, {VL}")
    a("v_lshlrev_b32 v99, 2, v99")
    a(f"ds_read_b32 v96, v99 offset:{L_M}")
    a(f"ds_read_b32 v97, v99 offset:{L_L}")
    a("v_mov_b32 v98, s4")
    a("v_mov_b32 v99, s5")
    a("s_waitcnt lgkmcnt(0)")
    for m in ("quad_perm:[1,0,3,2]", "quad_perm:[2,3,0,1]", "row_half_mirror"):
        a(f"v_max_f32_dpp v96, v96, v96 {m} {DPPF}")
        a(f"v_add_f32_dpp v97, v97, v97 {m} {DPPF}")
    a(f"s_lshl_b32 s38, {S_P}, 4")
    a(f"s_add_u32 s38, s38, {MLB}")
    a("s_mov_b64 exec, 1")
    a(f"buffer_store_dwordx4 v[96:99], {VZ}, {WSRD}, s38 offen sc1")
    a("s_mov_b64 exec, -1")
a("s_branch L_barA")

src = header(256, 1024, LDS_SIZE) + DOC.lstrip("\n") + kstart() + a.text() + kdesc(vgpr=128, sgpr=102 if (DIAG or DBG) else 80)
open(OUT, "w").write(src)
print("lines", len(a.lines), "lds", LDS_SIZE)
```

```python
import sys, struct
from emit import Asm
from hdr import *

DIAG = "-diag" in sys.argv
OUT = sys.argv[1]
def opt(name, default):
    for x in sys.argv:
        if x.startswith(f"-{name}="): return int(x.split("=")[1])
    return default
DEPTH = opt("depth", 3)
WOD = opt("wod", 2)
DEPTH2 = opt("depth2", 8)
N2 = opt("n2", 48)
DEPTH0 = opt("depth0", DEPTH)
N1 = opt("n1", 0)
BD = opt("bd", 4)
NORED = "-nored" in sys.argv
DBG = "-dbg" in sys.argv
NOCOMP = "-nocomp" in sys.argv
NOQW = "-noqw" in sys.argv
NOSVC = "-nosvc" in sys.argv
NOQP = "-noqp" in sys.argv
NOB1 = "-nob1" in sys.argv
NOB2 = "-nob2" in sys.argv
NOWO = "-nowo" in sys.argv
NOWQ = "-nowq" in sys.argv
QACK = "-noqack" not in sys.argv
QW = opt("qw", 23)
MAP = opt("map", 0)
ROT = opt("rot", 0)
OADD = "-oadd" in sys.argv
OUTSC = opt("outsc", 0)
TOUCH = "-touch" in sys.argv
PRIO = opt("prio", 0)
STAG = opt("stag", 8)
SINGLE = "-double" not in sys.argv
WPF = opt("wpf", 0)
YSL = opt("ysl", 0)
MLE = "-nomle" not in sys.argv
def f2u(x): return struct.unpack("<I", struct.pack("<f", x))[0]

QMB, BMB, QM2, MLB, EPO, YBB, YMB, DIAGO = 0x0, 0x40000, 0x6C000, 0x70000, 0x7F000, 0x80000, 0x100000, 0x200000
WS_SIZE = 0x300000
L_FQ, L_MC, L_LC = 8, 12, 16
L_OA = 0x800
L_M, L_L, L_Q, L_OPK, L_G = 0x40, 0x80, 0x100, 0x200, 0x340
L_OP, OPS = 0x400, 544
L_RED = 0x400 + 8 * 544
L_YT = L_RED + 1024
LDS_SIZE = L_YT + 2048
SC = (128 ** -0.5) * 1.4426950408889634
TMO_LDS = 1 << 20
TMO_MEM = 1 << 16


DOC = """
; ---------------------------------------------------------------------------------------------
;   workgroup wg -> head h = (wg%8)*4 + (wg/8)%4, key split s = wg/32 (1024 keys each).
;   Cross-workgroup hand-offs: 16-byte granules {d0, d1, tag1, tag2} written/read with sc1; the tag
; ---------------------------------------------------------------------------------------------
"""
a = Asm()
DPPF = "row_mask:0xf bank_mask:0xf"
S_WAVE, S_H, S_S, S_P = "s34", "s35", "s36", "s37"
KSRD, VSRD, WOSRD, TSRD, WSRD = "s[40:43]", "s[44:47]", "s[48:51]", "s[52:55]", "s[60:63]"
VL, VZ, VT = "v125", "v127", "v126"

def stamp(idx):
    if DIAG: a(f"s_memrealtime s[{80+2*idx}:{81+2*idx}]")
def timeout_check(lbl_abort="L_end"):
    a("s_sub_u32 s75, s75, 1")
    a("s_cmp_eq_u32 s75, 0")
    a(f"s_cbranch_scc1 {lbl_abort}")
_lc = [0]
def newlabel(p):
    _lc[0] += 1
    return f"L_{p}{_lc[0]}"
def lds_wait_flag(off, cmp_op="s_cmp_lg_u32", val="0", sleep=2):
    l0, l1 = newlabel("lw"), newlabel("lwd")
    a(f"s_mov_b32 s75, {TMO_LDS}")
    a.label(l0)
    a(f"ds_read_b32 {VT}, {VZ} offset:{off}")
    a("s_waitcnt lgkmcnt(0)")
    a(f"v_readfirstlane_b32 s38, {VT}")
    a(f"{cmp_op} s38, {val}")
    a(f"s_cbranch_scc1 {l1}")
    timeout_check()
    a(f"s_sleep {sleep}")
    a(f"s_branch {l0}")
    a.label(l1)
def lds_set_flag(off):
    a("s_mov_b64 exec, 1")
    a(f"v_mov_b32 {VT}, 1")
    a(f"ds_write_b32 {VZ}, {VT} offset:{off}")
    a("s_mov_b64 exec, -1")
def rowreduce8(acc, o0, o1):
    for j in range(4): a(f"v_permlane32_swap_b32 v{acc[j]}, v{acc[j+4]}")
    for j in range(4): a(f"v_add_f32 v{acc[j]}, v{acc[j]}, v{acc[j+4]}")
    a(f"v_permlane16_swap_b32 v{acc[0]}, v{acc[2]}")
    a(f"v_permlane16_swap_b32 v{acc[1]}, v{acc[3]}")
    a(f"v_add_f32 v{o0}, v{acc[0]}, v{acc[2]}")
    a(f"v_add_f32 v{o1}, v{acc[1]}, v{acc[3]}")
def row_allreduce(op, reg):
    for n in (8, 4, 2, 1):
        a(f"{op}_dpp v{reg}, v{reg}, v{reg} row_ror:{n} {DPPF}")
def wave_reduce_to63(op, reg):
    row_allreduce(op, reg)
    a(f"{op}_dpp v{reg}, v{reg}, v{reg} row_bcast:15 row_mask:0xa bank_mask:0xf")
    a(f"{op}_dpp v{reg}, v{reg}, v{reg} row_bcast:31 row_mask:0xc bank_mask:0xf")
def rb16(dst, src):
    a(f"v_cvt_pk_bf16_f32 v{dst}, 0, v{src}")
def red16(regs):
    for n in (4, 8):
        for r in regs: a(f"v_add_f32_dpp v{r}, v{r}, v{r} row_ror:{n} {DPPF}")
    a(f"v_permlane32_swap_b32 v{regs[0]}, v{regs[2]}")
    a(f"v_permlane32_swap_b32 v{regs[1]}, v{regs[3]}")
    a(f"v_add_f32 v{regs[0]}, v{regs[0]}, v{regs[2]}")
    a(f"v_add_f32 v{regs[1]}, v{regs[1]}, v{regs[3]}")
    a(f"v_permlane16_swap_b32 v{regs[0]}, v{regs[1]}")
    a(f"v_add_f32 v{regs[0]}, v{regs[0]}, v{regs[1]}")
def tag_bad(grans, acc, t):
    first = True
    for g in grans:
        if first:
            a(f"v_xor_b32 v{acc}, s4, v{g+2}")
            a(f"v_xor_b32 v{t}, s5, v{g+3}")
            a(f"v_or_b32 v{acc}, v{acc}, v{t}")
            first = False
        else:
            a(f"v_xor_b32 v{t}, s4, v{g+2}")
            a(f"v_or_b32 v{acc}, v{acc}, v{t}")
            a(f"v_xor_b32 v{t}, s5, v{g+3}")
            a(f"v_or_b32 v{acc}, v{acc}, v{t}")
    a(f"v_cmp_ne_u32 vcc, 0, v{acc}")
def make_tags():
    a("s_add_u32 s4, s6, 1")
    a("s_mul_i32 s5, s4, 0x9e3779b1")
    a("s_xor_b32 s5, s5, 0x5bd1e995")
class Sched:
    def __init__(self): self.issued = []; self.landed = -1
    def issue(self, name): self.issued.append(name)
    def wait(self, name):
        idx = self.issued.index(name)
        if idx > self.landed:
            a(f"s_waitcnt vmcnt({len(self.issued) - 1 - idx})")
            self.landed = idx
def ws_srd():
    a("s_mov_b32 s60, s32")
    a("s_mov_b32 s61, s33")
    a(f"s_mov_b32 s62, {WS_SIZE}")
    a("s_mov_b32 s63, 0x20000")

if DBG: a("s_memrealtime s[90:91]")
a("s_load_dwordx16 s[8:23], s[0:1], 0")
a("s_load_dwordx8 s[24:31], s[0:1], 64")
a("s_load_dwordx2 s[32:33], s[0:1], 96")
a("s_cmp_ge_u32 s2, 256")
a("s_cbranch_scc1 L_end")
a(f"v_and_b32 {VL}, 63, v0")
a(f"v_lshrrev_b32 {VT}, 6, v0")
a(f"v_mov_b32 {VZ}, 0")
a(f"v_readfirstlane_b32 {S_WAVE}, {VT}")
a("v_lshlrev_b32 v124, 4, v0")
if MAP in (0, 1, 3):
    a(f"s_and_b32 {S_H}, s2, 7")
    if MAP == 1: a(f"s_xor_b32 {S_H}, {S_H}, 4")
    if MAP == 3: a(f"s_xor_b32 {S_H}, {S_H}, 2")
    a(f"s_lshl_b32 {S_H}, {S_H}, 2")
    a(f"s_lshr_b32 {S_S}, s2, 3")
    a(f"s_and_b32 {S_S}, {S_S}, 3")
    a(f"s_or_b32 {S_H}, {S_H}, {S_S}")
    a(f"s_lshr_b32 {S_S}, s2, 5")
elif MAP == 2:
    a(f"s_lshr_b32 {S_H}, s2, 3")
    a(f"s_and_b32 {S_S}, s2, 7")
elif MAP == 4:
    a(f"s_and_b32 {S_H}, s2, 7")
    a(f"s_lshr_b32 {S_S}, s2, 3")
    a(f"s_and_b32 {S_S}, {S_S}, 3")
    a(f"s_lshl_b32 {S_S}, {S_S}, 3")
    a(f"s_or_b32 {S_H}, {S_H}, {S_S}")
    a(f"s_lshr_b32 {S_S}, s2, 5")
a(f"s_lshl_b32 {S_P}, {S_H}, 3")
a(f"s_or_b32 {S_P}, {S_P}, {S_S}")
a(f"s_cmp_lg_u32 {S_WAVE}, 8")
a("s_cbranch_scc1 L_noinit")
a(f"v_lshlrev_b32 {VT}, 2, {VL}")
a(f"ds_write_b32 {VT}, {VZ}")
if OADD:
    a(f"ds_write_b32 {VT}, {VZ} offset:{L_OA}")
    a(f"ds_write_b32 {VT}, {VZ} offset:{L_OA+256}")
a("s_waitcnt lgkmcnt(0)")
a.label("L_noinit")
a("s_barrier")
a(f"s_lshl_b32 s38, {S_P}, 18")
a("s_mov_b32 s42, 0x40000")
a("s_mov_b32 s43, 0x20000")
a("s_mov_b32 s46, 0x40000")
a("s_mov_b32 s47, 0x20000")
a(f"s_cmp_ge_u32 {S_WAVE}, 8")
a("s_waitcnt lgkmcnt(0)")
if DIAG: a("s_memrealtime s[80:81]")
a("s_cbranch_scc1 L_svc")
if ROT == 1:
    a("s_mul_i32 s7, s2, 5"); a("s_and_b32 s7, s7, 31"); a("s_lshl_b32 s7, s7, 13")
elif ROT == 2:
    a(f"s_lshl_b32 s7, {S_S}, 15")
elif ROT == 3:
    a("s_mul_i32 s7, s2, 0x9e3779b1"); a("s_lshr_b32 s7, s7, 27"); a("s_lshl_b32 s7, s7, 13")
a("s_add_u32 s40, s10, s38")
a("s_addc_u32 s41, s11, 0")
a("s_add_u32 s44, s12, s38")
a("s_addc_u32 s45, s13, 0")
if PRIO == 1: a("s_setprio 1")
sch = Sched()
NA, NB = 0, 64
def slot(kind, i):
    if kind == "K":
        if i < 16: return 4 * i
        if i < 24: return 32 + 4 * (i - 16)
        return 64 + 4 * (i - 24)
    else:
        if i < 8: return 64 + 4 * i
        if i < 16: return 4 * (i - 8)
        if i < 24: return 4 * (i - 16)
        return 32 + 4 * (i - 24)
order = [("K", i) for i in range(16)] + [("V", i) for i in range(16)] + [("K", i) for i in range(16, 32)] + [("V", i) for i in range(16, 32)]
def issue(n):
    k, i = order[n]
    D = DEPTH0 if n < N1 else (DEPTH if n < N2 else DEPTH2)
    if n >= D: sch.wait("%s%d" % order[n - D])
    d = slot(k, i)
    srd = KSRD if k == "K" else VSRD
    if ROT:
        a(f"s_add_u32 s67, s7, {i*8192}")
        a("s_and_b32 s67, s67, 0x3ffff")
        a(f"buffer_load_dwordx4 v[{d}:{d+3}], v124, {srd}, s67 offen nt")
    elif i == 0:
        a(f"buffer_load_dwordx4 v[{d}:{d+3}], v124, {srd}, 0 offen nt")
    else:
        a(f"s_mov_b32 s67, {i*8192}")
        a(f"buffer_load_dwordx4 v[{d}:{d+3}], v124, {srd}, s67 offen nt")
    sch.issue(f"{k}{i}")
def qk(i):
    sch.wait(f"K{i}")
    d = slot("K", i)
    for j in range(4 if not NOCOMP else 0):
        a(f"v_dot2c_f32_bf16 v{96 + i % 16}, v{d+j}, v{112+j}")
def pv(j):
    sch.wait(f"V{j}")
    d = slot("V", j)
    for t in range(4 if not NOCOMP else 0):
        a(f"v_dot2c_f32_bf16_dpp v{116+2*t}, v110, v{d+t} row_newbcast:{j % 16} {DPPF}")
        a(f"v_dot2c_f32_bf16_dpp v{117+2*t}, v111, v{d+t} row_newbcast:{j % 16} {DPPF}")
def butterfly():
    for i in range(8):
        a(f"v_add_f32_dpp v{96+i}, v{96+i}, v{96+i} row_ror:8 row_mask:0xf bank_mask:0x3")
        a(f"v_add_f32_dpp v{96+i}, v{104+i}, v{104+i} row_ror:8 row_mask:0xf bank_mask:0xc")
    for i in range(4):
        a(f"v_add_f32_dpp v{96+i}, v{96+i}, v{96+i} row_ror:12 row_mask:0xf bank_mask:0x5")
        a(f"v_add_f32_dpp v{96+i}, v{100+i}, v{100+i} row_ror:4 row_mask:0xf bank_mask:0xa")
    for i in range(4):
        a(f"v_add_f32_dpp v{96+i}, v{96+i}, v{96+i} quad_perm:[2,3,0,1] {DPPF}")
    a("v_cndmask_b32 v96, v96, v98, s[68:69]")
    a("v_cndmask_b32 v97, v97, v99, s[68:69]")
    a(f"v_add_f32_dpp v96, v96, v96 quad_perm:[1,0,3,2] {DPPF}")
    a(f"v_add_f32_dpp v97, v97, v97 quad_perm:[1,0,3,2] {DPPF}")
    a("v_cndmask_b32 v96, v96, v97, s[70:71]")
    a("v_mul_f32 v96, s78, v96")
    a("v_mov_b32 v97, v96")
    wave_reduce_to63("v_max_f32", 97)
C = {n: [] for n in range(64)}
def at(n, f): C[n].append(f)
def setup_scalars():
    ws_srd()
    a("s_mov_b32 s68, 0xcccccccc")
    a("s_mov_b32 s69, 0xcccccccc")
    a("s_mov_b32 s70, 0xaaaaaaaa")
    a("s_mov_b32 s71, 0xaaaaaaaa")
    a(f"s_mov_b32 s78, {f2u(SC):#x}")
    a(f"s_load_dword s6, s[32:33], {EPO}")
    a(f"v_and_b32 v121, 15, {VL}")
    a("v_lshlrev_b32 v121, 4, v121")
    for i in range(16): a(f"v_mov_b32 v{96+i}, 0")
at(min(DEPTH, DEPTH0) - 1, setup_scalars)
def qwait():
    if not NOQW: lds_wait_flag(L_FQ)
    a(f"ds_read_b128 v[112:115], v121 offset:{L_Q}")
    stamp(1)
    a("s_waitcnt lgkmcnt(0)")
at(QW, qwait)
qs = QW
for g in range(4):
    for i in range(4 * g, 4 * g + 4): at(qs + g, lambda i=i: qk(i))
def softmax0():
    butterfly()
    a("v_readlane_b32 s72, v97, 63")
    a("v_subrev_f32 v96, s72, v96")
    a("v_exp_f32 v96, v96")
    a("v_cvt_pk_bf16_f32 v110, v96, 0")
    a("v_cvt_pk_bf16_f32 v111, 0, v96")
    a("v_mov_b32 v97, v111")
    wave_reduce_to63("v_add_f32", 97)
    a("v_readlane_b32 s73, v97, 63")
    for j in range(8): a(f"v_mov_b32 v{116+j}, 0")
    make_tags()
    stamp(2)
s0 = qs + 4
at(s0, softmax0)
for j in range(8): at(s0 + 1 + j // 2, lambda j=j: pv(j))
p8 = s0 + 5
pvn = {}
for j in range(8):
    pvn[j] = max(p8 + j // 2, 24 + j + DEPTH)
    at(pvn[j], lambda j=j: pv(8 + j))
nz = pvn[7]
assert s0 + 4 < 40, "PV(V0..7) must finish before K24 issue"
assert nz < 48
def zeroS():
    for i in range(16): a(f"v_mov_b32 v{96+i}, 0")
at(nz, zeroS)
qkn = {}
prev = nz
cnt = 0
for j in range(16):
    n = max(nz, 32 + j + DEPTH)
    while qkn and sum(1 for v in qkn.values() if v == n) >= 3: n += 1
    if qkn: n = max(n, max(qkn.values()))
    while sum(1 for v in qkn.values() if v == n) >= 3: n += 1
    qkn[j] = n
    at(n, lambda j=j: qk(16 + j))
    assert j >= 8 or n < 56 + j, (j, n)
ns = qkn[15]
def softmax1():
    butterfly()
    a("v_readlane_b32 s74, v97, 63")
    a("v_mov_b32 v98, s72")
    a("v_max_f32 v98, s74, v98")
    a("v_sub_f32 v96, v96, v98")
    a("v_sub_f32 v99, s72, v98")
    a("v_exp_f32 v96, v96")
    a("v_exp_f32 v99, v99")
    a("v_readfirstlane_b32 s72, v98")
    a("v_cvt_pk_bf16_f32 v110, v96, 0")
    a("v_cvt_pk_bf16_f32 v111, 0, v96")
    for j in range(8): a(f"v_mul_f32 v{116+j}, v99, v{116+j}")
    a("s_mov_b64 exec, 1")
    a(f"s_lshl_b32 s38, {S_WAVE}, 2")
    a("v_mov_b32 v97, s38")
    a(f"ds_write_b32 v97, v98 offset:{L_M}")
    a("v_mov_b32 v98, 1")
    a(f"ds_add_u32 {VZ}, v98 offset:{L_MC}")
    a("s_mov_b64 exec, -1")
    a("v_mov_b32 v97, v111")
    wave_reduce_to63("v_add_f32", 97)
    a("v_mul_f32 v99, s73, v99")
    a("v_readlane_b32 s73, v97, 63")
    a("v_add_f32 v102, s73, v99")
    stamp(3)
at(ns, softmax1)
done = 16
for n in range(ns + 1, 64):
    k = 0
    while done < 32 and k < 2 and (48 + (done - 16) + DEPTH2) <= n:
        at(n, lambda j=done: pv(j)); done += 1; k += 1
for j in range(8): assert qs + j // 4 < 24 + j
for j in range(8): assert qs + (8 + j) // 4 < 32 + j
for j in range(8): assert pvn[j] < 48 + j
for n in range(64):
    issue(n)
    for f in C[n]: f()
lds_wait_flag(L_MC, "s_cmp_ge_u32", "8", sleep=1)
a(f"v_and_b32 v99, 7, {VL}")
a("v_lshlrev_b32 v99, 2, v99")
a(f"ds_read_b32 v100, v99 offset:{L_M}")
a(f"v_lshrrev_b32 v98, 4, {VL}")
a(f"v_and_b32 v103, 15, {VL}")
a("v_lshlrev_b32 v103, 5, v103")
a("v_lshl_add_u32 v103, v98, 3, v103")
a(f"s_mul_i32 s38, {S_WAVE}, {OPS}")
a("v_add_u32 v104, s38, v103")
a("s_waitcnt lgkmcnt(0)")
a(f"v_max_f32_dpp v100, v100, v100 quad_perm:[1,0,3,2] {DPPF}")
a(f"v_max_f32_dpp v100, v100, v100 quad_perm:[2,3,0,1] {DPPF}")
a(f"v_max_f32_dpp v100, v100, v100 row_half_mirror {DPPF}")
a("v_sub_f32 v101, s72, v100")
a("v_exp_f32 v101, v101")
a(f"s_lshl_b32 s38, {S_WAVE}, 2")
a("v_mov_b32 v99, s38")
a("v_mul_f32 v102, v102, v101")
a("s_mov_b64 exec, 1")
a(f"ds_write_b32 v99, v102 offset:{L_L}")
if MLE:
    a("v_mov_b32 v99, 1")
    a(f"ds_add_u32 {VZ}, v99 offset:{L_LC}")
a("s_mov_b64 exec, -1")
for j in range(done, 32): pv(j)
stamp(4)
rowreduce8(list(range(116, 124)), 116, 117)
a("v_mul_f32 v116, v101, v116")
a("v_mul_f32 v117, v101, v117")
if OADD:
    a(f"ds_add_f32 v103, v116 offset:{L_OA}")
    a(f"ds_add_f32 v103, v117 offset:{L_OA+4}")
else:
    a(f"ds_write_b64 v104, v[116:117] offset:{L_OP}")
a.label("L_barA")
if not OADD:
    a(f"v_and_b32 v106, 7, {VL}")
    a(f"v_mul_u32_u24 v106, {OPS}, v106")
    a(f"v_bfe_u32 v107, {VL}, 3, 2")
    a("v_lshl_add_u32 v106, v107, 3, v106")
    a(f"s_lshl_b32 s38, {S_WAVE}, 5")
    a("v_add_u32 v106, s38, v106")
    a(f"s_lshl_b32 s38, {S_WAVE}, 4")
    a("v_lshl_add_u32 v107, v107, 2, s38")
    a("s_mov_b32 s38, 0x01010101")
    a("s_mov_b32 s39, 0")
a("s_waitcnt lgkmcnt(0)")
stamp(5)
a("s_barrier")
if not OADD:
    a(f"ds_read_b64 v[108:109], v106 offset:{L_OP}")
    a("s_waitcnt lgkmcnt(0)")
    for m in ("quad_perm:[1,0,3,2]", "quad_perm:[2,3,0,1]", "row_half_mirror"):
        a(f"v_add_f32_dpp v108, v108, v108 {m} {DPPF}")
        a(f"v_add_f32_dpp v109, v109, v109 {m} {DPPF}")
    a("v_cvt_pk_bf16_f32 v108, v108, v109")
    a("s_mov_b64 exec, s[38:39]")
    a(f"ds_write_b32 v107, v108 offset:{L_OPK}")
    a("s_mov_b64 exec, -1")
    a("s_waitcnt lgkmcnt(0)")
    a("s_barrier")
a(f"s_cmp_ge_u32 {S_WAVE}, 8")
a("s_cbranch_scc1 L_yphase")
if not MLE:
    a(f"s_cmp_lg_u32 {S_WAVE}, 0")
    a("s_cbranch_scc1 L_pubdone")
    a(f"v_and_b32 v99, 7, {VL}")
    a("v_lshlrev_b32 v99, 2, v99")
    a(f"ds_read_b32 v1, v99 offset:{L_L}")
    a("v_mov_b32 v2, s4")
    a("v_mov_b32 v3, s5")
    a("v_mov_b32 v0, v100")
    a("s_waitcnt lgkmcnt(0)")
    for m in ("quad_perm:[1,0,3,2]", "quad_perm:[2,3,0,1]", "row_half_mirror"):
        a(f"v_add_f32_dpp v1, v1, v1 {m} {DPPF}")
    a(f"s_lshl_b32 s38, {S_P}, 4")
    a(f"s_add_u32 s38, s38, {MLB}")
    a("s_mov_b64 exec, 1")
    a(f"buffer_store_dwordx4 v[0:3], {VZ}, {WSRD}, s38 offen sc1")
    a("s_mov_b64 exec, -1")
a("s_branch L_pubdone")
a.label("L_yphase")
if OADD:
    for q in range(4): a(f"ds_read_b128 v[{100+4*q}:{103+4*q}], v93 offset:{L_OA+16*q}")
    for q in range(4):
        a(f"s_waitcnt lgkmcnt({3-q})")
        a(f"v_cvt_pk_bf16_f32 v{72+2*q}, v{100+4*q}, v{101+4*q}")
        a(f"v_cvt_pk_bf16_f32 v{73+2*q}, v{102+4*q}, v{103+4*q}")
else:
    a(f"ds_read_b128 v[72:75], v105 offset:{L_OPK}")
    a(f"ds_read_b128 v[76:79], v105 offset:{L_OPK+16}")
    a("s_waitcnt lgkmcnt(0)")
PMAP = {}
spare = 64
for k in range(8):
    A_, B_ = 8 * k, 8 * k + 4
    PMAP[k] = (spare, B_)
    spare = A_
for k in range(8):
    lo, hi = PMAP[k]
    for j in range(4):
        a(f"v_dot2c_f32_bf16 v{80+2*j}, v{72+k}, v{lo+j}")
        a(f"v_dot2c_f32_bf16 v{81+2*j}, v{72+k}, v{hi+j}")
rowreduce8(list(range(80, 88)), 88, 89)
a(f"v_add_f32_dpp v88, v88, v88 row_ror:8 {DPPF}")
a(f"v_add_f32_dpp v89, v89, v89 row_ror:8 {DPPF}")
a(f"buffer_store_dwordx4 v[88:91], v92, {WSRD}, s79 offen sc1")
stamp(6)
a.label("L_pubdone")
a("s_cmp_ge_u32 s2, 0" if NORED else "s_cmp_ge_u32 s2, 32")
a("s_cbranch_scc1 L_fin")
a(f"s_lshl_b32 s38, {S_WAVE}, 6")
a(f"v_add_u32 v99, s38, {VL}")
a("v_lshlrev_b32 v98, 5, v99")
a("v_lshrrev_b32 v97, 2, v99")
a("v_lshlrev_b32 v97, 4, v97")
a("s_lshl_b32 s38, s2, 14")
a(f"s_add_u32 s38, s38, {YBB}")
a("s_add_u32 s52, s32, s38")
a("s_addc_u32 s53, s33, 0")
a(f"s_mov_b32 s54, {86*128}")
a("s_mov_b32 s55, 0x20000")
a("s_lshl_b32 s38, s2, 15")
a(f"s_add_u32 s38, s38, {YMB}")
a(f"s_mov_b32 s39, {MLB}")
a(f"ds_read_b64 v[24:25], {VZ} offset:{L_G}")
a("s_mov_b32 s79, 0x158")
a("v_cmp_gt_u32 s[72:73], s79, v99")
a(f"s_mov_b32 s75, {TMO_MEM}")
a.label("L_mlpoll")
a(f"buffer_load_dwordx4 v[8:11], v97, {WSRD}, s39 offen sc1")
a(f"buffer_load_dwordx4 v[12:15], v98, {TSRD}, 0 offen sc1")
a(f"buffer_load_dwordx4 v[16:19], v98, {TSRD}, 0 offen offset:16 sc1")
a("s_waitcnt vmcnt(0)")
tag_bad([12, 16], 20, 21)
a("s_and_b64 s[76:77], vcc, s[72:73]")
tag_bad([8], 20, 21)
a("s_or_b64 s[76:77], s[76:77], vcc")
a("s_cmp_eq_u64 s[76:77], 0")
a("s_cbranch_scc1 L_mlok")
timeout_check()
a("s_sleep 2")
a.label("L_mlpoll2")
a(f"buffer_load_dwordx4 v[8:11], v97, {WSRD}, s39 offen sc1")
a("s_waitcnt vmcnt(0)")
tag_bad([8], 20, 21)
a("s_cbranch_vccnz L_mlretry")
a("s_branch L_mlpoll")
a.label("L_mlretry")
timeout_check()
a("s_sleep 2")
a("s_branch L_mlpoll2")
a.label("L_mlok")
def ldy(base):
    a(f"buffer_load_dwordx4 v[{base}:{base+3}], v98, {WSRD}, s38 offen sc1")
    a(f"buffer_load_dwordx4 v[{base+4}:{base+7}], v98, {WSRD}, s38 offen offset:16 sc1")
ldy(0)
a("v_mov_b32 v26, v8")
a(f"v_max_f32_dpp v26, v26, v26 row_ror:4 {DPPF}")
a(f"v_max_f32_dpp v26, v26, v26 row_ror:8 {DPPF}")
a("v_mov_b32 v27, v26")
a("v_permlane16_swap_b32 v26, v27")
a("v_max_f32 v26, v26, v27")
a("v_sub_f32 v26, v8, v26")
a("v_exp_f32 v26, v26")
a("v_mul_f32 v28, v26, v9")
a(f"v_add_f32_dpp v28, v28, v28 row_ror:4 {DPPF}")
a(f"v_add_f32_dpp v28, v28, v28 row_ror:8 {DPPF}")
a("v_mov_b32 v27, v28")
a("v_permlane16_swap_b32 v28, v27")
a("v_add_f32 v28, v28, v27")
a("v_rcp_f32 v28, v28")
a("s_waitcnt lgkmcnt(0)")
a("v_mul_f32 v26, v26, v24")
a("v_mul_f32 v26, v26, v28")
a("v_mul_f32 v12, v25, v12")
a("v_mul_f32 v13, v25, v13")
a("v_mul_f32 v16, v25, v16")
a("v_mul_f32 v17, v25, v17")
a(f"v_and_b32 v46, 3, {VL}")
a("v_lshlrev_b32 v46, 4, v46")
a(f"v_lshrrev_b32 v47, 4, {VL}")
a("v_lshl_add_u32 v46, v47, 2, v46")
a(f"s_lshl_b32 s79, {S_WAVE}, 6")
a("v_add_u32 v47, s79, v46")
if SINGLE:
    a.label("L_rpoll")
    a("s_waitcnt vmcnt(0)")
    tag_bad([0, 4], 20, 21)
    a("s_cbranch_vccz L_rokA")
    if YSL: a(f"s_sleep {YSL}")
    ldy(0)
    timeout_check()
    a("s_branch L_rpoll")
else:
    if STAG: a(f"s_sleep {STAG}")
    ldy(32)
    a.label("L_rpoll")
    a("s_waitcnt vmcnt(2)")
    tag_bad([0, 4], 20, 21)
    a("s_cbranch_vccz L_rokA")
    ldy(0)
    a("s_waitcnt vmcnt(2)")
    tag_bad([32, 36], 20, 21)
    a("s_cbranch_vccz L_rokB")
    ldy(32)
    timeout_check()
    a("s_branch L_rpoll")
a.label("L_rokB")
a("v_fma_f32 v40, v26, v32, v12")
a("v_fma_f32 v41, v26, v33, v13")
a("v_fma_f32 v42, v26, v36, v16")
a("v_fma_f32 v43, v26, v37, v17")
a("s_branch L_rok")
a.label("L_rokA")
a("v_fma_f32 v40, v26, v0, v12")
a("v_fma_f32 v41, v26, v1, v13")
a("v_fma_f32 v42, v26, v4, v16")
a("v_fma_f32 v43, v26, v5, v17")
a.label("L_rok")
stamp(7)
red16([40, 41, 42, 43])
a("s_mov_b32 s38, 0x000f000f")
a("s_mov_b32 s39, 0x000f000f")
a("s_mov_b64 exec, s[38:39]")
a(f"ds_write_b32 v47, v40 offset:{L_RED}")
a("s_mov_b64 exec, -1")
a("s_waitcnt lgkmcnt(0)")
a("s_barrier")
a(f"s_cmp_lg_u32 {S_WAVE}, 0")
a("s_cbranch_scc1 L_fin")
a(f"v_lshlrev_b32 v47, 4, {VL}")
a(f"ds_read_b128 v[40:43], v47 offset:{L_RED}")
a("v_lshrrev_b32 v46, 1, v46")
a("s_lshl_b32 s79, s2, 5")
a("s_mov_b32 s52, s28")
a("s_mov_b32 s53, s29")
a("s_mov_b32 s54, 1024")
a("s_mov_b32 s55, 0x20000")
a("v_mov_b32 v44, s4")
a("s_waitcnt lgkmcnt(0)")
red16([40, 41, 42, 43])
a("v_cvt_pk_bf16_f32 v40, v40, 0")
a("s_mov_b64 exec, s[38:39]")
a(f"buffer_store_short v40, v46, {TSRD}, s79 offen")
a("s_cmp_lg_u32 s2, 0")
a("s_cbranch_scc1 L_fin")
a("s_mov_b64 exec, 1")
a(f"s_mov_b32 s38, {EPO}")
a(f"buffer_store_dword v44, {VZ}, {WSRD}, s38 offen sc1")
a.label("L_fin")
a("s_mov_b64 exec, -1")
if DIAG:
    a("s_memrealtime s[96:97]")
    a("s_waitcnt vmcnt(0) lgkmcnt(0)")
    for k in range(11): a(f"v_mov_b32 v{k}, s{80+2*k}")
    a("s_getreg_b32 s38, hwreg(HW_REG_XCC_ID)")
    a("v_mov_b32 v11, s38")
    a("s_lshl_b32 s38, s2, 4")
    a(f"s_add_u32 s38, s38, {S_WAVE}")
    a("s_lshl_b32 s38, s38, 6")
    a(f"s_add_u32 s38, s38, {DIAGO}")
    a("s_mov_b64 exec, 1")
    a(f"buffer_store_dwordx4 v[0:3], {VZ}, {WSRD}, s38 offen")
    a(f"buffer_store_dwordx4 v[4:7], {VZ}, {WSRD}, s38 offen offset:16")
    a(f"buffer_store_dwordx4 v[8:11], {VZ}, {WSRD}, s38 offen offset:32")
if DBG:
    a("s_cmp_ge_u32 s2, 8")
    a("s_cbranch_scc1 L_end")
    a(f"s_cmp_lg_u32 {S_WAVE}, 0")
    a("s_cbranch_scc1 L_end")
    a("s_memrealtime s[92:93]")
    a("s_waitcnt lgkmcnt(0)")
    a("v_mov_b32 v0, s90")
    a("v_mov_b32 v1, s92")
    a("s_mov_b32 s52, s30")
    a("s_mov_b32 s53, s31")
    a("s_mov_b32 s54, 256")
    a("s_mov_b32 s55, 0x20000")
    a("s_lshl_b32 s38, s2, 3")
    a("s_mov_b64 exec, 1")
    a(f"buffer_store_dwordx2 v[0:1], {VZ}, {TSRD}, s38 offen")
a.label("L_end")
a("s_endpgm")

a.label("L_svc")
if PRIO == 2:
    a(f"s_cmp_lg_u32 {S_WAVE}, 8")
    a("s_cbranch_scc1 L_noprio")
    a("s_setprio 2")
    a.label("L_noprio")
ws_srd()
if NOSVC:
    a("s_mov_b32 s79, 0x7fffffff")
    a("v_mov_b32 v104, 0")
    a("v_mov_b32 v105, 0")
    a("s_branch L_barA")
a(f"s_load_dword s6, s[32:33], {EPO}")
if TOUCH:
    a(f"s_cmp_lg_u32 {S_WAVE}, 15")
    a("s_cbranch_scc1 L_notouch")
    a(f"s_lshl_b32 s38, {S_P}, 18")
    a("s_add_u32 s44, s12, s38")
    a("s_addc_u32 s45, s13, 0")
    a(f"s_lshl_b32 s38, {S_H}, 17")
    a("s_add_u32 s48, s16, s38")
    a("s_addc_u32 s49, s17, 0")
    a("s_mov_b32 s50, 0x20000")
    a("s_mov_b32 s51, 0x20000")
    a("s_mov_b64 exec, 1")
    a(f"buffer_load_dword v0, {VZ}, {VSRD}, 0 offen nt")
    a(f"buffer_load_dword v1, {VZ}, {WOSRD}, 0 offen nt")
    a(f"s_mov_b32 s38, {YMB}")
    a(f"buffer_load_dword v2, {VZ}, {WSRD}, s38 offen sc1")
    a("s_mov_b32 s52, s28")
    a("s_mov_b32 s53, s29")
    a("s_mov_b32 s54, 1024")
    a("s_mov_b32 s55, 0x20000")
    a(f"buffer_load_dword v3, {VZ}, {TSRD}, 0 offen")
    a("s_mov_b64 exec, -1")
    a.label("L_notouch")
if WPF:
    a(f"s_cmp_lg_u32 {S_WAVE}, 14")
    a("s_cbranch_scc1 L_nopf")
    a(f"s_lshl_b32 s38, {S_H}, 17")
    a("s_add_u32 s48, s16, s38")
    a("s_addc_u32 s49, s17, 0")
    a("s_mov_b32 s50, 0x20000")
    a("s_mov_b32 s51, 0x20000")
    a(f"v_lshlrev_b32 v120, 4, {VL}")
    a(f"s_lshl_b32 s38, {S_S}, 14")
    for i in range(16):
        if i >= 4: a("s_waitcnt vmcnt(3)")
        a(f"buffer_load_dwordx4 v[{4*i}:{4*i+3}], v120, {WOSRD}, s38 offen offset:{(i%4)*1024}" + (" nt" if WPF == 1 else ""))
        if i % 4 == 3: a("s_add_u32 s38, s38, 4096")
    a.label("L_nopf")
a(f"s_cmp_eq_u32 {S_WAVE}, 9")
a("s_cbranch_scc1 L_b1")
a(f"s_cmp_eq_u32 {S_WAVE}, 10")
a("s_cbranch_scc1 L_b2")
a(f"s_cmp_eq_u32 {S_WAVE}, 11")
a("s_cbranch_scc1 L_gate")
a(f"s_cmp_lg_u32 {S_WAVE}, 8")
a("s_cbranch_scc1 L_wo")
a(f"s_lshl_b32 s38, {S_S}, 19")
a(f"s_lshl_b32 s39, {S_H}, 8")
a("s_add_u32 s38, s38, s39")
a("s_add_u32 s52, s14, s38")
a("s_addc_u32 s53, s15, 0")
a("s_sub_u32 s54, 0x400000, s38")
a("s_mov_b32 s55, 0x20000")
a(f"v_lshrrev_b32 v122, 4, {VL}")
a(f"v_and_b32 v121, 15, {VL}")
a("v_lshlrev_b32 v120, 17, v122")
a("v_lshl_add_u32 v120, v121, 4, v120")
a("v_lshlrev_b32 v119, 5, v122")
a(f"s_lshl_b32 s38, {S_S}, 7")
a("v_add_u32 v119, s38, v119")
a("global_load_dwordx4 v[64:67], v119, s[8:9]")
a("global_load_dwordx4 v[68:71], v119, s[8:9] offset:16")
for i in range(16 if not NOWQ else 0):
    a(f"buffer_load_dwordx4 v[{4*i}:{4*i+3}], v120, {TSRD}, 0 offen nt")
    if i < 15: a("v_add_u32 v120, 0x2000, v120")
for j in range(8): a(f"v_mov_b32 v{104+j}, 0")
a("s_waitcnt vmcnt(16)")
for k in range(8):
    a(f"v_and_b32 v{72+4*k}, 0xffff, v{64+k}")
    a(f"v_lshlrev_b32 v{73+4*k}, 16, v{64+k}")
    a(f"v_lshrrev_b32 v{74+4*k}, 16, v{64+k}")
    a(f"v_and_b32 v{75+4*k}, 0xffff0000, v{64+k}")
for i in range(16):
    a(f"s_waitcnt vmcnt({15 - i})")
    for j in range(4):
        a(f"v_dot2c_f32_bf16 v{104+2*j}, v{72+2*i}, v{4*i+j}")
        a(f"v_dot2c_f32_bf16 v{105+2*j}, v{73+2*i}, v{4*i+j}")
rowreduce8(list(range(104, 112)), 104, 105)
a("s_waitcnt lgkmcnt(0)")
make_tags()
a("v_mov_b32 v106, s4")
a("v_mov_b32 v107, s5")
a("v_lshlrev_b32 v119, 6, v121")
a("v_lshl_add_u32 v119, v122, 4, v119")
a(f"s_lshl_b32 s79, {S_P}, 10")
a(f"buffer_store_dwordx4 v[104:107], v119, {WSRD}, s79 offen sc1")
stamp(9)
if QACK: a("s_waitcnt vmcnt(0)")
a(f"v_lshlrev_b32 v119, 4, {VL}")
a(f"s_lshl_b32 s79, {S_H}, 13")
a("s_add_u32 s38, s79, 4096")
a(f"s_mov_b32 s75, {TMO_MEM}")
a.label("L_qpoll")
if NOQP: a("s_branch L_qok")
for i in range(8):
    so = "s79" if i < 4 else "s38"
    a(f"buffer_load_dwordx4 v[{4*i}:{4*i+3}], v119, {WSRD}, {so} offen offset:{1024*(i%4)} sc1")
a("s_waitcnt vmcnt(0)")
tag_bad([4*i for i in range(8)], 32, 33)
a("s_cbranch_vccz L_qok")
timeout_check()
a("s_branch L_qpoll")
a.label("L_qok")
for j in range(2):
    a(f"v_add_f32 v{j}, v{j}, v{4+j}")
    a(f"v_add_f32 v{8+j}, v{8+j}, v{12+j}")
    a(f"v_add_f32 v{16+j}, v{16+j}, v{20+j}")
    a(f"v_add_f32 v{24+j}, v{24+j}, v{28+j}")
for j in range(2):
    a(f"v_add_f32 v{j}, v{j}, v{8+j}")
    a(f"v_add_f32 v{16+j}, v{16+j}, v{24+j}")
for j in range(2): a(f"v_add_f32 v{j}, v{j}, v{16+j}")
a("v_cvt_pk_bf16_f32 v0, v0, v1")
a(f"v_lshlrev_b32 v119, 2, {VL}")
a(f"ds_write_b32 v119, v0 offset:{L_Q}")
a("s_waitcnt lgkmcnt(0)")
lds_set_flag(L_FQ)
stamp(10)
a("s_branch L_wo2")

a.label("L_b1")
if NOB1: a("s_branch L_wo")
a("s_cmp_ge_u32 s2, 172")
a("s_cbranch_scc1 L_wo")
a("s_and_b32 s38, s2, 3")
a(f"s_mul_i32 s39, s38, {64*5504}")
a("s_lshr_b32 s79, s2, 2")
a("s_lshl_b32 s74, s79, 7")
a("s_add_u32 s39, s39, s74")
a("s_add_u32 s52, s20, s39")
a("s_addc_u32 s53, s21, 0")
a(f"s_sub_u32 s54, {512*2752}, s39")
a("s_mov_b32 s55, 0x20000")
a("s_add_u32 s48, s22, s39")
a("s_addc_u32 s49, s23, 0")
a("s_mov_b32 s50, s54")
a("s_mov_b32 s51, 0x20000")
a(f"v_lshrrev_b32 v122, 3, {VL}")
a(f"v_and_b32 v121, 7, {VL}")
a(f"v_mul_u32_u24 v120, {8*5504}, v122")
a("v_lshl_add_u32 v120, v121, 4, v120")
a("v_lshlrev_b32 v119, 5, v122")
a("s_lshl_b32 s38, s38, 8")
a("v_add_u32 v119, s38, v119")
a("global_load_dwordx4 v[64:67], v119, s[8:9]")
a("global_load_dwordx4 v[68:71], v119, s[8:9] offset:16")
a("s_lshl_b32 s74, s79, 6")
a("v_lshl_add_u32 v118, v121, 3, s74")
a("s_movk_i32 s74, 1375")
a("v_cmp_lt_u32 vcc, s74, v118")
a("v_cndmask_b32 v118, 0, 16, vcc")
nl = 0
for i in range(8):
    for srd, base in ((TSRD, 0), (WOSRD, 32)):
        if nl >= BD: a(f"s_waitcnt vmcnt({BD-1})")
        a(f"buffer_load_dwordx4 v[{base+4*i}:{base+4*i+3}], v120, {srd}, 0 offen nt"); nl += 1
    if i < 7: a("v_add_u32 v120, 5504, v120")
for j in range(16): a(f"v_mov_b32 v{96+j}, 0")
a("s_waitcnt vmcnt(0)")
for i in range(8):
    a(f"v_lshrrev_b32 v117, v118, v{64+i}")
    a(f"v_and_b32 v{72+2*i}, 0xffff, v117")
    a(f"v_lshlrev_b32 v{73+2*i}, 16, v117")
for i in range(8):
    for j in range(4):
        a(f"v_dot2c_f32_bf16 v{96+2*j}, v{72+2*i}, v{4*i+j}")
        a(f"v_dot2c_f32_bf16 v{97+2*j}, v{73+2*i}, v{4*i+j}")
        a(f"v_dot2c_f32_bf16 v{104+2*j}, v{72+2*i}, v{32+4*i+j}")
        a(f"v_dot2c_f32_bf16 v{105+2*j}, v{73+2*i}, v{32+4*i+j}")
for b in (96, 104):
    for j in range(4): a(f"v_permlane32_swap_b32 v{b+j}, v{b+4+j}")
for b in (96, 104):
    for j in range(4): a(f"v_add_f32 v{b+j}, v{b+j}, v{b+4+j}")
for b in (96, 104):
    for j in range(2): a(f"v_permlane16_swap_b32 v{b+j}, v{b+2+j}")
for b in (96, 104):
    for j in range(2): a(f"v_add_f32 v{b+j}, v{b+j}, v{b+2+j}")
for b in (96, 104):
    a(f"v_add_f32_dpp v{b}, v{b}, v{b} row_ror:8 row_mask:0xf bank_mask:0x3")
    a(f"v_add_f32_dpp v{b}, v{b+1}, v{b+1} row_ror:8 row_mask:0xf bank_mask:0xc")
a("s_waitcnt lgkmcnt(0)")
make_tags()
a("v_mov_b32 v97, v104")
a("v_mov_b32 v98, s4")
a("v_mov_b32 v99, s5")
a(f"v_bfe_u32 v100, {VL}, 5, 1")
a("v_lshlrev_b32 v100, 2, v100")
a(f"v_bfe_u32 v101, {VL}, 4, 1")
a("v_lshl_add_u32 v100, v101, 1, v100")
a(f"v_bfe_u32 v101, {VL}, 3, 1")
a("v_add_u32 v100, v100, v101")
a("v_lshl_add_u32 v100, v121, 3, v100")
a("v_lshlrev_b32 v100, 4, v100")
a("s_lshl_b32 s79, s2, 10")
a(f"s_add_u32 s79, s79, {BMB}")
a(f"buffer_store_dwordx4 v[96:99], v100, {WSRD}, s79 offen sc1")
stamp(9)
a("s_branch L_wo")

a.label("L_b2")
if NOB2: a("s_branch L_wo")
a("s_cmp_lt_u32 s2, 170")
a("s_cbranch_scc1 L_wo")
a("s_sub_u32 s79, s2, 170")
a("s_lshl_b32 s38, s79, 14")
a("s_add_u32 s52, s24, s38")
a("s_addc_u32 s53, s25, 0")
a("s_mov_b32 s54, 16384")
a("s_mov_b32 s55, 0x20000")
a(f"v_lshlrev_b32 v102, 4, {VL}")
for i in range(16):
    if i >= BD: a(f"s_waitcnt vmcnt({BD-1})")
    a(f"s_mov_b32 s67, {i*1024}")
    a(f"buffer_load_dwordx4 v[{4*i}:{4*i+3}], v102, {TSRD}, s67 offen nt")
a(f"v_and_b32 v114, 15, {VL}")
a("s_lshl_b32 s38, s79, 4")
a("v_add_u32 v114, s38, v114")
a("v_add_u32 v115, 1376, v114")
a(f"v_lshrrev_b32 v103, 4, {VL}")
a("v_lshlrev_b32 v103, 10, v103")
for r, d in ((114, 116), (115, 117)):
    a(f"v_lshrrev_b32 v{d}, 6, v{r}")
    a(f"v_lshlrev_b32 v{d}, 12, v{d}")
    a(f"v_and_b32 v{r}, 63, v{r}")
    a(f"v_lshl_add_u32 v{d}, v{r}, 4, v{d}")
    a(f"v_add_u32 v{d}, v{d}, v103")
lds_wait_flag(L_FQ, sleep=8)
a(f"s_mov_b32 s38, {BMB}")
make_tags()
a(f"s_mov_b32 s75, {TMO_MEM}")
a.label("L_bpoll")
if NOB1: a("s_branch L_bok")
a(f"buffer_load_dwordx4 v[104:107], v116, {WSRD}, s38 offen sc1")
a(f"buffer_load_dwordx4 v[108:111], v117, {WSRD}, s38 offen sc1")
a("s_waitcnt vmcnt(0)")
tag_bad([104, 108], 100, 101)
a("s_cbranch_vccz L_bok")
timeout_check()
a("s_sleep 8")
a("s_branch L_bpoll")
a.label("L_bok")
a("v_add_f32 v112, v104, v108")
a("v_add_f32 v113, v105, v109")
for r in (112, 113):
    a(f"v_mov_b32 v100, v{r}")
    a(f"v_permlane16_swap_b32 v{r}, v100")
    a(f"v_add_f32 v{r}, v{r}, v100")
    a(f"v_mov_b32 v100, v{r}")
    a(f"v_permlane32_swap_b32 v{r}, v100")
    a(f"v_add_f32 v{r}, v{r}, v100")
rb16(112, 112)
rb16(113, 113)
a("v_mul_f32 v114, v112, v113")
a("v_cvt_pk_bf16_f32 v112, v114, 0")
a("v_cvt_pk_bf16_f32 v113, 0, v114")
for j in range(8): a(f"v_mov_b32 v{96+j}, 0")
for i in range(16):
    for j in range(4):
        a(f"v_dot2c_f32_bf16_dpp v{96+2*j}, v112, v{4*i+j} row_newbcast:{i} {DPPF}")
        a(f"v_dot2c_f32_bf16_dpp v{97+2*j}, v113, v{4*i+j} row_newbcast:{i} {DPPF}")
a(f"v_lshlrev_b32 v114, 5, {VL}")
a(f"ds_write_b128 v114, v[96:99] offset:{L_YT}")
a(f"ds_write_b128 v114, v[100:103] offset:{L_YT+16}")
a(f"v_lshlrev_b32 v114, 3, {VL}")
a("s_waitcnt lgkmcnt(0)")
for k in range(4):
    a(f"ds_read_b64 v[{96+4*k}:{97+4*k}], v114 offset:{L_YT + 512*k}")
for k in range(4):
    a(f"v_mov_b32 v{98+4*k}, s4")
    a(f"v_mov_b32 v{99+4*k}, s5")
a(f"v_lshrrev_b32 v114, 3, {VL}")
a("v_lshlrev_b32 v114, 14, v114")
a(f"v_and_b32 v115, 7, {VL}")
a("v_lshl_add_u32 v114, v115, 4, v114")
a("s_lshl_b32 s38, s79, 7")
a(f"s_add_u32 s38, s38, {YBB}")
a("s_waitcnt lgkmcnt(0)")
for k in range(4):
    a(f"buffer_store_dwordx4 v[{96+4*k}:{99+4*k}], v114, {WSRD}, s38 offen sc1")
    if k < 3: a("s_add_u32 s38, s38, 0x20000")
stamp(9)
a("s_branch L_wo")

a.label("L_gate")
a("s_cmp_ge_u32 s2, 32")
a("s_cbranch_scc1 L_wo")
a(f"v_lshlrev_b32 v102, 4, {VL}")
a("global_load_dwordx4 v[8:11], v102, s[8:9]")
a("global_load_dwordx4 v[12:15], v102, s[26:27]")
a("v_mov_b32 v16, 0")
a("s_mov_b32 s38, 0x3f803f80")
a("s_waitcnt vmcnt(0)")
for j in range(4):
    a(f"v_lshlrev_b32 v17, 16, v{8+j}")
    a(f"v_lshlrev_b32 v18, 16, v{12+j}")
    a(f"v_and_b32 v19, 0xffff0000, v{8+j}")
    a(f"v_and_b32 v20, 0xffff0000, v{12+j}")
    a("v_mul_f32 v17, v17, v18")
    a("v_mul_f32 v19, v19, v20")
    a("v_cvt_pk_bf16_f32 v17, v17, v19")
    a("v_dot2c_f32_bf16 v16, s38, v17")
wave_reduce_to63("v_add_f32", 16)
a("v_readlane_b32 s38, v16, 63")
a("v_mov_b32 v16, s38")
rb16(16, 16)
a(f"v_mul_f32 v16, {f2u(-1.4426950408889634):#x}, v16")
a("v_exp_f32 v16, v16")
a("v_add_f32 v16, 1.0, v16")
a("v_rcp_f32 v16, v16")
rb16(16, 16)
a("v_sub_f32 v17, 1.0, v16")
rb16(17, 17)
a("s_mov_b64 exec, 1")
a(f"ds_write_b64 {VZ}, v[16:17] offset:{L_G}")
a("s_mov_b64 exec, -1")
a.label("L_wo")
lds_wait_flag(L_FQ, sleep=8)
a.label("L_wo2")
a(f"s_lshl_b32 s38, {S_H}, 17")
a("s_add_u32 s48, s16, s38")
a("s_addc_u32 s49, s17, 0")
a("s_mov_b32 s50, 0x20000")
a("s_mov_b32 s51, 0x20000")
a("s_mov_b32 s76, 0x05040100")
a("s_mov_b32 s77, 0x07060302")
a(f"v_lshrrev_b32 v122, 3, {VL}")
a(f"v_and_b32 v121, 7, {VL}")
a("v_lshlrev_b32 v120, 14, v122")
a("v_lshl_add_u32 v120, v121, 4, v120")
a(f"s_sub_u32 s74, {S_WAVE}, 8")
a("s_lshl_b32 s38, s74, 7")
a("v_add_u32 v120, s38, v120")
sw = Sched()
for i in range(16):
    if i >= WOD and not NOWO: sw.wait(f"W{i-WOD}")
    a(f"s_mov_b32 s67, {i*1024}")
    if not NOWO: a(f"buffer_load_dwordx4 v[{4*i}:{4*i+3}], v120, {WOSRD}, s67 offen nt")
    sw.issue(f"W{i}")
a("v_lshlrev_b32 v105, 5, v122")
a("v_lshlrev_b32 v93, 6, v122")
a(f"v_bfe_u32 v100, {VL}, 5, 1")
a("v_lshlrev_b32 v100, 1, v100")
a(f"v_bfe_u32 v101, {VL}, 4, 1")
a("v_add_u32 v100, v100, v101")
a("v_lshl_add_u32 v100, v121, 2, v100")
a("v_lshrrev_b32 v101, 3, v100")
a("v_lshlrev_b32 v101, 15, v101")
a("v_and_b32 v100, 7, v100")
a("v_lshl_add_u32 v92, v100, 4, v101")
a(f"v_bfe_u32 v101, {VL}, 3, 1")
a("v_lshl_or_b32 v92, v101, 31, v92")
a("s_lshl_b32 s38, s74, 17")
a(f"s_lshl_b32 s79, {S_P}, 7")
a("s_add_u32 s79, s79, s38")
a(f"s_add_u32 s79, s79, {YMB}")
a("s_waitcnt lgkmcnt(0)")
make_tags()
a("v_mov_b32 v90, s4")
a("v_mov_b32 v91, s5")
for k in range(8):
    sw.wait(f"W{2*k+1}")
    lo, hi = PMAP[k]
    A_, B_ = 8 * k, 8 * k + 4
    for j in range(4): a(f"v_perm_b32 v{lo+j}, v{B_+j}, v{A_+j}, s76")
    for j in range(4): a(f"v_perm_b32 v{hi+j}, v{B_+j}, v{A_+j}, s77")
for j in range(80, 88): a(f"v_mov_b32 v{j}, 0")
stamp(4)
if MLE:
    a(f"s_cmp_lg_u32 {S_WAVE}, 12")
    a("s_cbranch_scc1 L_barA")
    lds_wait_flag(L_LC, "s_cmp_ge_u32", "8", sleep=2)
    a(f"v_and_b32 v99, 7, {VL}")
    a("v_lshlrev_b32 v99, 2, v99")
    a(f"ds_read_b32 v96, v99 offset:{L_M}")
    a(f"ds_read_b32 v97, v99 offset:{L_L}")
    a("v_mov_b32 v98, s4")
    a("v_mov_b32 v99, s5")
    a("s_waitcnt lgkmcnt(0)")
    for m in ("quad_perm:[1,0,3,2]", "quad_perm:[2,3,0,1]", "row_half_mirror"):
        a(f"v_max_f32_dpp v96, v96, v96 {m} {DPPF}")
        a(f"v_add_f32_dpp v97, v97, v97 {m} {DPPF}")
    a(f"s_lshl_b32 s38, {S_P}, 4")
    a(f"s_add_u32 s38, s38, {MLB}")
    a("s_mov_b64 exec, 1")
    a(f"buffer_store_dwordx4 v[96:99], {VZ}, {WSRD}, s38 offen sc1")
    a("s_mov_b64 exec, -1")
a("s_branch L_barA")

src = header(256, 1024, LDS_SIZE) + DOC.lstrip("\n") + kstart() + a.text() + kdesc(vgpr=128, sgpr=102 if (DIAG or DBG) else 80)
open(OUT, "w").write(src)
print("lines", len(a.lines), "lds", LDS_SIZE)
```
